```python
import torch

def _softmax(x, axis=-1):
    return torch.softmax(x, dim=axis)
def _gelu(x):
    return torch.nn.functional.gelu(x, approximate="tanh")
def _silu(x):
    return torch.nn.functional.silu(x)
def _sigmoid(x):
    return torch.sigmoid(x)
def _layernorm(x, axis=-1, eps=1e-5):
    m = x.mean(dim=axis, keepdim=True)
    v = x.var(dim=axis, keepdim=True, unbiased=False)
    return (x - m) / torch.sqrt(v + eps)
def _scatter_add(tgt, idx, src, axis=0):
    return tgt.clone().index_add_(axis, idx, src)
def _segment_sum(src, seg, n):
    out = torch.zeros((n,) + src.shape[1:], dtype=src.dtype)
    return out.index_add_(0, seg, src)
def _pad(x, pw):
    flat = tuple(v for pair in reversed(pw) for v in pair)
    return torch.nn.functional.pad(x, flat)

kernel_name = 'sequential_preLN__ssm_conv_s4__dense_activation_relu__prompt'

def setup_inputs():

    _w = (lambda a: (lambda t: t.to(torch.bfloat16) if t.is_floating_point() else t)(torch.as_tensor(a)))
    def _A_setup():
        B, L, D, N = 1, 2048, 512, 128
        A_re = -(lambda _x: torch.exp(torch.as_tensor(_x)))((lambda *s: torch.randn(*s, dtype=torch.bfloat16) * 6.4)(D, N))
        A_im = torch.pi * (lambda *s: torch.randn(*s, dtype=torch.bfloat16) * 0.05)(D, N)
        B_re = (lambda *s: torch.randn(*s, dtype=torch.bfloat16) * 0.05)(D, N)
        B_im = (lambda *s: torch.randn(*s, dtype=torch.bfloat16) * 0.05)(D, N)
        C_re = (lambda *s: torch.randn(*s, dtype=torch.bfloat16) * 0.05)(D, N)
        C_im = (lambda *s: torch.randn(*s, dtype=torch.bfloat16) * 0.05)(D, N)
        log_dt = (lambda *s: torch.randn(*s, dtype=torch.bfloat16) * 0.05)(D) * 0.5 - 4.0
        Dskip = (lambda *s: torch.randn(*s, dtype=torch.bfloat16) * 0.05)(D)
        return {
            "u": _w((lambda *s: torch.randn(*s, dtype=torch.bfloat16) * 0.05)(B, L, D)),
            "A_re": _w(A_re),
            "A_im": _w(A_im),
            "B_re": _w(B_re),
            "B_im": _w(B_im),
            "C_re": _w(C_re),
            "C_im": _w(C_im),
            "log_dt": _w(log_dt),
            "Dskip": _w(Dskip),
        }
    _A_in = _A_setup()

    def _B_setup():
        B, S, D, Dff = 1, 2048, 512, 1792
        return {
            "x": _w((lambda *s: torch.randn(*s, dtype=torch.bfloat16) * 0.05)(B, S, D)),
            "w1": _w((lambda *s: torch.randn(*s, dtype=torch.bfloat16) * 0.05)(D, Dff)),
            "w2": _w((lambda *s: torch.randn(*s, dtype=torch.bfloat16) * 0.05)(Dff, D)),
        }
    _B_in = _B_setup()

    return {
        "A_u": _A_in["u"],
        "A_A_re": _A_in["A_re"],
        "A_A_im": _A_in["A_im"],
        "A_B_re": _A_in["B_re"],
        "A_B_im": _A_in["B_im"],
        "A_C_re": _A_in["C_re"],
        "A_C_im": _A_in["C_im"],
        "A_log_dt": _A_in["log_dt"],
        "A_Dskip": _A_in["Dskip"],
        "B_x": _B_in["x"],
        "B_w1": _B_in["w1"],
        "B_w2": _B_in["w2"],
    }

def reference(A_u, A_A_re, A_A_im, A_B_re, A_B_im, A_C_re, A_C_im, A_log_dt, A_Dskip, B_x, B_w1, B_w2):
    def _A_ref(u, A_re, A_im, B_re, B_im, C_re, C_im, log_dt, Dskip):
        Bsz, L, D = u.shape
        dt = torch.exp(log_dt)[:, None]
        A = A_re + 1j * A_im
        Bc = B_re + 1j * B_im
        Cc = C_re + 1j * C_im
        logdA = dt * A
        dB = dt * Bc
        l = (lambda x, dt: x.to(dt))(torch.arange(L), A_re.dtype)
        P = torch.exp(logdA[:, :, None] * l[None, None, :])
        K = torch.einsum("dn,dnl,dn->dl", Cc, P, dB).real
        L2 = 2 * L
        Kp = _pad(K, ((0, 0), (0, L)))
        up = (lambda x, *d: x.permute(*d))(u, 0, 2, 1)
        up = _pad(up, ((0, 0), (0, 0), (0, L)))
        Kf = (lambda x, axes=(-2,-1): torch.fft.rfft2(x.float(), dim=axes))(Kp[:, None, :], axes=(-2, -1))
        Uf = (lambda x, axes=(-2,-1): torch.fft.rfft2(x.float(), dim=axes))(up[:, :, None, :], axes=(-2, -1))
        Yf = Uf * Kf[None, :, :, :]
        y = (lambda x, s, axes=(-2,-1): torch.fft.irfft2(x, s=s, dim=axes).to(torch.bfloat16))(Yf, (1, L2), axes=(-2, -1))[:, :, 0, :L]
        y = (lambda x, *d: x.permute(*d))(y, 0, 2, 1) + u * Dskip[None, None, :]
        return y

    def _B_ref(x, w1, w2):
        h = torch.einsum("bsd,df->bsf", x, w1)
        zero = torch.zeros_like(h)
        h = torch.maximum(h, zero)
        return torch.einsum("bsf,fd->bsd", h, w2)

    x = A_u
    h = x + _A_ref(_layernorm(x, axis=-1), A_A_re, A_A_im, A_B_re, A_B_im, A_C_re, A_C_im, A_log_dt, A_Dskip)
    h2 = h + _B_ref(_layernorm(h, axis=-1), B_w1, B_w2)
    return h2
```

```python
NAME = "sequential_preLN__ssm_conv_s4__dense_activation_relu__prompt"
class Asm:
    def __init__(self):
        self.lines = []
        self.lab = 0
    def __call__(self, s):
        for ln in s.strip("\n").split("\n"):
            self.lines.append("    " + ln.strip())
    def label(self, name):
        self.lines.append(name + ":")
    def newlabel(self, base="L"):
        self.lab += 1
        return f"{base}_{self.lab}"
    def text(self):
        return "\n".join(self.lines) + "\n"

def kernel_desc(name, vgpr, sgpr=102, accum=None, wgy=False):
    if accum is None:
        accum = (vgpr + 3) // 4 * 4
        accum = min(accum, 256)
    s = f""".amdhsa_kernel {name}
  .amdhsa_next_free_vgpr {vgpr}
  .amdhsa_next_free_sgpr {sgpr}
  .amdhsa_accum_offset {accum}
  .amdhsa_group_segment_fixed_size 0
  .amdhsa_kernarg_size 120
  .amdhsa_user_sgpr_count 2
  .amdhsa_user_sgpr_kernarg_segment_ptr 1
  .amdhsa_system_sgpr_workgroup_id_x 1
"""
    if wgy:
        s += "  .amdhsa_system_sgpr_workgroup_id_y 1\n"
    s += "  .amdhsa_float_denorm_mode_32 3\n"
    s += ".end_amdhsa_kernel\n"
    return s

def single_file(body, grid, block, lds, vgpr, sgpr=102, accum=None, header=""):
    name = NAME + "_kernel"
    return f"""{header}; @launch grid=({grid},1,1) block=({block},1,1) lds={lds}
.amdgcn_target "amdgcn-amd-amdhsa--gfx950"
.text
.globl {name}
.p2align 8
.type {name},@function
{name}:
{body}
.section .rodata,"a"
.p2align 6
{kernel_desc(name, vgpr, sgpr, accum)}"""

def multi_file(kernels, launches, header=""):
    s = header
    for (n, g, b, l) in launches:
        s += f"; @launch kernel={n} grid=({g},1,1) block=({b},1,1) lds={l}\n"
    s += '.amdgcn_target "amdgcn-amd-amdhsa--gfx950"\n.text\n'
    for (n, body, v, sg, acc) in kernels:
        s += f".globl {n}\n.p2align 8\n.type {n},@function\n{n}:\n{body}\n"
    s += '.section .rodata,"a"\n'
    for (n, body, v, sg, acc) in kernels:
        s += ".p2align 6\n" + kernel_desc(n, v, sg, acc)
    return s
```

```python
from gen import *
class K(Asm):
    def __init__(self, diag=False):
        super().__init__()
        self.vq = []
        self.dq = []
        self.diag = diag
        self.nstamp = 0
        self.pend = []
    def vm(self, instr, tag="_"):
        self(instr); self.vq.append(tag)
    def ds(self, instr, tag="_"):
        self(instr); self.dq.append(tag)
    def _after(self, q, tag):
        idx = [i for i, t in enumerate(q) if t == tag]
        if not idx: return None
        return len(q) - 1 - idx[-1]
    def vmwait(self, tag=None):
        if tag is None:
            self("s_waitcnt vmcnt(0)"); self.vq = []; return
        n = self._after(self.vq, tag)
        if n is None: return
        m = min(n, 63)
        self(f"s_waitcnt vmcnt({m})")
        self.vq = self.vq[len(self.vq)-m:] if m else []
    def dswait(self, tag=None):
        if tag is None:
            self("s_waitcnt lgkmcnt(0)"); self.dq = []; return
        n = self._after(self.dq, tag)
        if n is None: return
        m = min(n, 15)
        self(f"s_waitcnt lgkmcnt({m})")
        self.dq = self.dq[len(self.dq)-m:] if m else []
    def stamp(self, name=""):
        if not self.diag: return
        i = self.nstamp; self.nstamp += 1
        pair = 4 + 2*(i % 5)
        if len(self.pend) >= 4:
            j, p = self.pend.pop(0)
            self(f"v_writelane_b32 v{self.VSTAMP}, s{p}, {j}")
        self(f"s_memtime s[{pair}:{pair+1}]")
        self.pend.append((i, pair))
        self.stampnames = getattr(self, "stampnames", []) + [name]
    def flush_stamps(self):
        self("s_waitcnt lgkmcnt(0)")
        for j, p in self.pend:
            self(f"v_writelane_b32 v{self.VSTAMP}, s{p}, {j}")
        self.pend = []

def vr(b, n):
    return f"v[{b}:{b+n-1}]" if n > 1 else f"v{b}"
def ar(b, n):
    return f"a[{b}:{b+n-1}]" if n > 1 else f"a{b}"
```

```python
import sys
from kb import *
DIAG = "diag" in sys.argv
DUMPK = "dumpk" in sys.argv
OUT = [x for x in sys.argv[1:] if x.endswith(".s")][0]

XT, HT, H1F, ST, EP, STAMPS, DBG = 0x0, 0x400000, 0x600000, 0xD00000, 0xD10000, 0xE00000, 0xF00000
RA, RB, RC = 0, 65536, 131072
KC = RB; KCS = 4160; KCH = 4*KCS
UC = RB + 2*KCH; UCS = 4640; UCH = 2*UCS
XC = UC + 2*UCH
assert XC + 8192 <= RC
SCR = RC; SCW = 4352; SCH = 2176
EX = RC + 4*SCW
STG = EX + 8192
CP = RC
G1X = RC + 16384
RES = RC + 24576
PS = 1088
SPIN = 200000

k = K(DIAG); k.VSTAMP = 143
TID, L16, VHT, LP, AX, W2V, LANE = 0, 1, 2, 3, 4, 8, 12
CS = 144
def w1reg(n, off=0, cnt=4):
    return vr(160+4*n+off, cnt) if n < 24 else ar(224+4*(n-24)+off, cnt)
WV = 3
SWS, SX, SW1, SW2, SOUT, SH1 = 44, 48, 52, 56, 60, 64
TAG = 68
RG, FT, RG2, DT, ROT1, ROT2 = 72, 73, 74, 75, 76, 77
MASK = 80
ONES = 82
def srd(r): return f"s[{r}:{r+3}]"

def cmul(d, x, y, conj=False, negim=False):
    if negim:
        k(f"v_pk_mul_f32 {vr(d,2)}, {vr(x,2)}, {vr(y,2)} op_sel:[0,0] op_sel_hi:[1,0] neg_hi:[1,0]")
        k(f"v_pk_fma_f32 {vr(d,2)}, {vr(x,2)}, {vr(y,2)}, {vr(d,2)} op_sel:[1,1,0] op_sel_hi:[0,1,1] neg_lo:[1,0,0] neg_hi:[1,0,0]")
        return
    k(f"v_pk_mul_f32 {vr(d,2)}, {vr(x,2)}, {vr(y,2)} op_sel:[0,0] op_sel_hi:[1,0]")
    k(f"v_pk_fma_f32 {vr(d,2)}, {vr(x,2)}, {vr(y,2)}, {vr(d,2)} op_sel:[1,1,0] op_sel_hi:[0,1,1] " + ("neg_hi:[1,0,0]" if conj else "neg_lo:[1,0,0]"))

def unpack(d, s):
    k(f"v_and_b32 v{d+1}, s{MASK}, v{s}")
    k(f"v_lshlrev_b32 v{d}, 16, v{s}")

def stats_finish(S, Q, T, MB, R):
    k(f"s_mov_b32 s78, 0x3b000000")
    k(f"s_mov_b32 s79, 0x3b000000")
    k(f"v_pk_mul_f32 {vr(S,2)}, {vr(S,2)}, s[78:79]")
    k(f"v_pk_mul_f32 {vr(Q,2)}, {vr(Q,2)}, s[78:79]")
    k(f"v_pk_fma_f32 {vr(Q,2)}, {vr(S,2)}, {vr(S,2)}, {vr(Q,2)} neg_lo:[1,0,0] neg_hi:[1,0,0]")
    k(f"v_cvt_pk_bf16_f32 v{MB}, v{S}, v{S+1}")
    k(f"v_max_f32 v{Q}, 0, v{Q}")
    k(f"v_max_f32 v{Q+1}, 0, v{Q+1}")
    k(f"v_cvt_pk_bf16_f32 v{T}, v{Q}, v{Q+1}")
    unpack(Q, T)
    k(f"v_add_f32 v{Q}, 0x3727c5ac, v{Q}")
    k(f"v_add_f32 v{Q+1}, 0x3727c5ac, v{Q+1}")
    k(f"v_cvt_pk_bf16_f32 v{T}, v{Q}, v{Q+1}")
    unpack(Q, T)
    k(f"v_sqrt_f32 v{Q}, v{Q}")
    k(f"v_sqrt_f32 v{Q+1}, v{Q+1}")
    k("s_nop 0")
    k(f"v_cvt_pk_bf16_f32 v{T}, v{Q}, v{Q+1}")
    unpack(Q, T)
    k(f"v_rcp_f32 v{R}, v{Q}")
    k(f"v_rcp_f32 v{R+1}, v{Q+1}")
    k("s_nop 0")

k.label("Lstart")
k("s_getpc_b64 s[90:91]")
k("""
s_load_dwordx16 s[16:31], s[0:1], 0
s_load_dwordx8 s[32:39], s[0:1], 64
s_load_dwordx2 s[40:41], s[0:1], 96
s_load_dwordx2 s[42:43], s[0:1], 112
s_cmp_ge_u32 s2, 256
s_cbranch_scc1 Lend
""")
if DIAG:
    k("s_memrealtime s[14:15]")
    k(f"v_mov_b32 v{k.VSTAMP}, 0")
k.stamp("start")
k(f"""
v_lshlrev_b32 v141, 7, v0
v_min_u32 v141, Lend-Lstart-8, v141
""")
k.vm("global_load_dword v142, v141, s[90:91]", "code")
k(f"""
v_readfirstlane_b32 s{WV}, v0
v_and_b32 v{LANE}, 63, v0
v_lshlrev_b32 v{L16}, 4, v{LANE}
s_lshr_b32 s{WV}, s{WV}, 6
s_mov_b32 s{MASK}, 0xffff0000
s_mov_b32 s{ONES}, 0x3f803f80
v_and_b32 v50, 1, v0
v_lshlrev_b32 v50, 12, v50
v_lshrrev_b32 v51, 2, v0
v_lshl_add_u32 v50, v51, 4, v50
s_lshl_b32 s78, s2, 9
v_lshl_add_u32 v52, v0, 1, s78
v_mov_b32 v40, 0
v_mov_b32 v41, 0
v_mov_b32 v42, 0
v_mov_b32 v43, 0
v_mov_b32 v44, 0
v_mov_b32 v45, 0
v_lshrrev_b32 v53, 3, v0
v_lshlrev_b32 v53, 15, v53
v_and_b32 v54, 7, v0
v_lshl_add_u32 v{VHT}, v54, 4, v53
v_mov_b32 v68, -1
v_mov_b32 v69, -1
v_mov_b32 v70, -1
v_mov_b32 v71, -1
s_and_b32 s78, s2, 7          ; xcd
s_lshr_b32 s79, s2, 3         ; j
s_and_b32 s81, s79, 3         ; j&3
s_lshr_b32 s{DT}, s79, 2      ; dt = j>>2
s_lshl_b32 s{RG2}, s78, 2
s_add_u32 s{RG2}, s{RG2}, s81
s_lshr_b32 s{RG}, s78, 1
s_lshl_b32 s{RG}, s{RG}, 2
s_add_u32 s{RG}, s{RG}, s81
s_min_u32 s83, s{DT}, 6
s_and_b32 s{FT}, s78, 1
s_mul_i32 s{FT}, s{FT}, 7
s_add_u32 s{FT}, s{FT}, s83
s_lshl_b32 s{ROT1}, s81, 1
s_add_u32 s{ROT1}, s{ROT1}, s{DT}
s_mov_b32 s{ROT2}, s{ROT1}
s_cmp_ge_u32 s{ROT2}, 7
s_cselect_b32 s84, 7, 0
s_sub_u32 s{ROT2}, s{ROT2}, s84
s_waitcnt lgkmcnt(0)
""")
k.stamp("karg")
k(f"""
s_mov_b32 s79, {EP}
s_load_dwordx2 s[{TAG}:{TAG+1}], s[42:43], s79
s_lshl_b32 s78, s2, 2
s_load_dword s70, s[30:31], s78
s_load_dword s71, s[32:33], s78
s_mov_b32 s{SX}, s16
s_mov_b32 s{SX+1}, s17
s_mov_b32 s{SX+2}, 0x200000
s_mov_b32 s{SX+3}, 0x20000
s_mov_b32 s{SWS}, s42
s_mov_b32 s{SWS+1}, s43
s_mov_b32 s{SWS+2}, 0x10000000
s_mov_b32 s{SWS+3}, 0x20000
s_lshl_b32 s84, s2, 13        ; wg*8192
s_lshl_b32 s85, s{WV}, 11
s_add_u32 s85, s85, s84       ; + w*2048
s_lshl_b32 s86, s2, 7
s_add_u32 s86, s86, {HT}
s_add_u32 s87, s86, 0x100000
""")
k.vm(f"buffer_store_dwordx4 v[68:71], v{VHT}, {srd(SWS)}, s86 offen sc1", "clrh")
k.vm(f"buffer_store_dwordx4 v[68:71], v{VHT}, {srd(SWS)}, s87 offen sc1", "clrh")
for i in range(4):
    k.vm(f"buffer_load_dwordx4 {vr(24+4*i,4)}, v50, {srd(SX)}, s84 offen offset:{1024*i}", "xt")
for i in range(2):
    k.vm(f"buffer_load_dwordx4 {vr(16+4*i,4)}, v{L16}, {srd(SX)}, s85 offen offset:{1024*i}", "xs")
for i in range(6):
    k.vm(f"global_load_short_d16_hi v{40+i}, v52, s[{18+2*i}:{19+2*i}]", "par")
k(f"""
s_mov_b32 s{SW1}, s36
s_mov_b32 s{SW1+1}, s37
s_mov_b32 s{SW1+2}, {512*1792*2}
s_mov_b32 s{SW1+3}, 0x20000
s_mov_b32 s{SW2}, s38
s_mov_b32 s{SW2+1}, s39
s_mov_b32 s{SW2+2}, {512*1792*2}
s_mov_b32 s{SW2+3}, 0x20000
s_mov_b32 s{SOUT}, s40
s_mov_b32 s{SOUT+1}, s41
s_mov_b32 s{SOUT+2}, 0x200000
s_mov_b32 s{SOUT+3}, 0x20000
s_mov_b32 s{SH1}, s42
s_mov_b32 s{SH1+1}, s43
s_cmp_lt_u32 s{DT}, 7
s_cselect_b32 s{SH1+2}, 0x10000000, 0
s_mov_b32 s{SH1+3}, 0x20000
; W1 voffsets v46..49
v_lshrrev_b32 v53, 2, v{LANE}
v_mul_u32_u24 v46, 3584, v53
v_and_b32 v54, 3, v{LANE}
v_lshl_add_u32 v46, v54, 4, v46
v_add_u32 v47, {57344-1024}, v46
v_add_u32 v48, {2*(57344-1024)}, v46
v_add_u32 v49, {3*(57344-1024)}, v46
s_lshl_b32 s84, s{FT}, 8
s_lshl_b32 s85, s{WV}, 6
s_add_u32 s84, s84, s85        ; ft*256 + w*64
s_lshl_b32 s85, s{WV}, 14      ; w*16384
""")
for gi in range(8):
    k(f"s_add_u32 s78, s{ROT1}, {gi}")
    k(f"s_and_b32 s78, s78, 7")
    k(f"s_mul_i32 s78, s78, {4*57344}")
    k(f"s_add_u32 m0, s85, {(RB if gi < 4 else RA) + (gi & 3)*4096}")
    k(f"s_add_u32 s78, s78, s84")
    for i in range(4):
        k.vm(f"buffer_load_dwordx4 v{46+i}, {srd(SW1)}, s78 offen offset:{1024*i} lds", "w1")
k(f"""
s_mul_i32 s88, s{RG}, {2*114688}
s_lshl_b32 s78, s{FT}, 13
s_add_u32 s88, s88, s78
s_lshl_b32 s78, s{WV}, 11
s_add_u32 s88, s88, s78
s_add_u32 s88, s88, {H1F}
""")
for hf in range(2):
    for tb in range(2):
        k(f"s_add_u32 s78, s88, {(32*hf+tb)*114688}")
        for i in range(2):
            k.vm(f"buffer_store_dwordx4 v[68:71], v{L16}, {srd(SH1)}, s78 offen offset:{1024*i} sc1", "clr1")
k(f"""
; LP = ((l>>5)*4 + ((l>>2)&3))*64 + ((l>>4)&1)*32 + (l&3)*8
v_lshrrev_b32 v{LP}, 5, v{LANE}
v_lshlrev_b32 v{LP}, 8, v{LP}
v_bfe_u32 v55, v{LANE}, 2, 2
v_lshl_add_u32 v{LP}, v55, 6, v{LP}
v_bfe_u32 v55, v{LANE}, 4, 1
v_lshl_add_u32 v{LP}, v55, 5, v{LP}
v_lshl_add_u32 v{LP}, v54, 3, v{LP}
""")
for i in range(4):
    k(f"s_xor_b32 s78, s{WV}, {i}")
    k(f"s_lshl_b32 s78, s78, 11")
    k(f"v_add_u32 v{AX+i}, s78, v{LP}")
k(f"""
; W2 voffsets: ((l>>2)&7)*1024 + (l>>5)*64 + (l&3)*16 + i*7168
v_bfe_u32 v55, v{LANE}, 2, 3
v_lshlrev_b32 v{W2V}, 10, v55
v_lshrrev_b32 v55, 5, v{LANE}
v_lshl_add_u32 v{W2V}, v55, 6, v{W2V}
v_lshl_add_u32 v{W2V}, v54, 4, v{W2V}
v_add_u32 v{W2V+1}, 7168, v{W2V}
v_add_u32 v{W2V+2}, {2*7168}, v{W2V}
v_add_u32 v{W2V+3}, {3*7168}, v{W2V}
v_lshlrev_b32 v51, 16, v51
v_lshl_add_u32 v51, v54, 4, v51
v_bfe_u32 v53, v0, 1, 1
v_mul_u32_u24 v53, 0x020202, v53
v_lshl_or_b32 v53, v53, 8, v53
v_add_u32 v53, 0x05040100, v53
s_waitcnt lgkmcnt(0)
s_add_u32 s{TAG}, s{TAG}, 1
s_lshl_b32 s84, s2, 6
""")
k.vmwait("xt")
k.stamp("xload")
for j in range(4):
    g = 52 + 0
for j in range(4):
    G = 72 + 4*j
    k(f"v_perm_b32 v{G}, v{28+j}, v{24+j}, v53")
    k(f"v_perm_b32 v{G+1}, v{36+j}, v{32+j}, v53")
    k(f"v_mov_b32 v{G+2}, s{TAG}")
    k(f"v_mov_b32 v{G+3}, s{TAG+1}")
    k(f"s_add_u32 s78, s84, {XT + j*16384}")
    k.vm(f"buffer_store_dwordx4 {vr(G,4)}, v51, {srd(SWS)}, s78 offen sc1", "xtst")
k.vmwait("xs")
S, Q = 56, 58
for r in range(2):
    k(f"v_dot2_f32_bf16 v{S+r}, v{16+4*r}, s{ONES}, 0")
    k(f"v_dot2_f32_bf16 v{Q+r}, v{16+4*r}, v{16+4*r}, 0")
for i in range(1, 4):
    for r in range(2):
        k(f"v_dot2_f32_bf16 v{S+r}, v{16+4*r+i}, s{ONES}, v{S+r}")
        k(f"v_dot2_f32_bf16 v{Q+r}, v{16+4*r+i}, v{16+4*r+i}, v{Q+r}")
k("s_nop 2")
for ctl in ["row_shr:1 row_mask:0xf bank_mask:0xf bound_ctrl:0", "row_shr:2 row_mask:0xf bank_mask:0xf bound_ctrl:0",
            "row_shr:4 row_mask:0xf bank_mask:0xf bound_ctrl:0", "row_shr:8 row_mask:0xf bank_mask:0xf bound_ctrl:0",
            "row_bcast:15 row_mask:0xa bank_mask:0xf", "row_bcast:31 row_mask:0xc bank_mask:0xf"]:
    for r in range(4):
        k(f"v_add_f32_dpp v{S+r}, v{S+r}, v{S+r} {ctl}")
stats_finish(S, Q, 60, 66, 64)
k(f"""
v_mov_b32 v67, s{TAG}
s_lshl_b32 s78, s{WV}, 4
s_add_u32 s78, s78, {STG}
v_mov_b32 v61, s78
s_mov_b64 s[92:93], exec
s_mov_b32 exec_lo, 0
s_mov_b32 exec_hi, 0x80000000
""")
k.ds("ds_write_b128 v61, v[64:67]")
k("s_mov_b64 exec, s[92:93]")
k.vmwait("clrh")
k.dswait()
k("s_barrier")
k(f"""
s_cmp_lg_u32 s{WV}, 0
s_cbranch_scc1 Lnopub
s_mov_b64 exec, 0xf
v_add_u32 v61, {STG}, v{L16}
ds_read_b128 v[64:67], v61
s_add_u32 s78, s84, {ST}
s_waitcnt lgkmcnt(0)
buffer_store_dwordx4 v[64:67], v{L16}, {srd(SWS)}, s78 offen sc1
s_mov_b64 exec, s[92:93]
""")
k.label("Lnopub")
k.stamp("pub")
k.vmwait("par")
k(f"""
s_lshl_b32 s78, s70, 16
s_and_b32 s79, s70, s{MASK}
s_cmp_lt_u32 s{WV}, 2
s_cselect_b32 s78, s78, s79
v_mov_b32 v16, 0x3fb8aa3b
v_mul_f32 v16, s78, v16
v_exp_f32 v16, v16
s_mov_b32 s78, 0x3fb8aa3b
s_mov_b32 s79, 0x3e22f983
v_cvt_pk_bf16_f32 v16, v16, v16
v_lshlrev_b32 v16, 16, v16
v_pk_mul_f32 v[40:41], v[40:41], v[16:17] op_sel_hi:[1,0]
v_pk_mul_f32 v[42:43], v[42:43], v[16:17] op_sel_hi:[1,0]
v_pk_mul_f32 v[40:41], v[40:41], s[78:79]
""")
WC = 18
cmul(WC, 44, 42, negim=True)
E = {}
nxt = [72]
def newE(l):
    E[l] = nxt[0]; nxt[0] += 2
    assert nxt[0] <= 142
    return E[l]
def direct(l):
    d = newE(l)
    if l == 1:
        a_, b_ = 40, 41
    else:
        k(f"v_mul_f32 v20, {float(l)}, v40" if l in (2,4) else f"v_mul_f32 v20, {hex(__import__('struct').unpack('<I', __import__('struct').pack('<f', float(l)))[0])}, v40")
        k(f"v_mul_f32 v21, {hex(__import__('struct').unpack('<I', __import__('struct').pack('<f', float(l)))[0])}, v41")
        a_, b_ = 20, 21
    k(f"v_fract_f32 v22, v{b_}")
    k(f"v_exp_f32 v24, v{a_}")
    k(f"v_cos_f32 v{d}, v22")
    k(f"v_sin_f32 v{d+1}, v22")
    k("s_nop 0")
    k(f"v_pk_mul_f32 {vr(d,2)}, {vr(d,2)}, v[24:25] op_sel_hi:[1,0]")
direct(8); direct(128); direct(1)
k(f"""
s_mul_i32 s78, s{WV}, {SCW}
s_add_u32 s78, s78, {SCR}
v_add_u32 v46, s78, v{L16}
v_lshrrev_b32 v47, 2, v{LANE}
v_lshlrev_b32 v47, 4, v47
v_bfe_u32 v48, v{LANE}, 1, 1
v_mul_u32_u24 v48, {SCH}, v48
v_add3_u32 v47, v47, v48, s78
v_and_b32 v48, 1, v{LANE}
v_lshl_add_u32 v47, v48, 3, v47
""")
FR = 128
def tile_reads(t):
    for s in range(4):
        for rd in range(2):
            k.ds(f"ds_read_b64_tr_b16 {ar(FR+16*t+4*s+2*rd,2)}, v47 offset:{512*s+256*rd}", "kf")
packsel = [0]
def pack8(vals, hf):
    P = 56 + 8*packsel[0]; packsel[0] ^= 1
    for i in range(4):
        k(f"v_cvt_pk_bf16_f32 v{P+i}, {vals[2*i][0]}, {vals[2*i+1][0]}")
    k.ds(f"ds_write_b128 v46, {vr(P,4)} offset:{hf*SCH}")
    for i in range(4):
        k(f"v_cvt_pk_bf16_f32 v{P+4+i}, {vals[2*i][1]}, {vals[2*i+1][1]}")
    k.ds(f"ds_write_b128 v46, {vr(P+4,4)} offset:{hf*SCH+1024}")
cmul(20, WC, E[128], conj=True)
k(f"""
s_and_b32 s78, s{WV}, 1
s_cmp_eq_u32 s78, 1
s_cselect_b64 vcc, -1, 0
v_cndmask_b32 v24, v{WC}, v20, vcc
v_cndmask_b32 v25, v{WC+1}, v21, vcc
v_cndmask_b32 v44, v20, v{WC}, vcc
v_cndmask_b32 v45, v21, v{WC+1}, vcc
""")
GB = 24
for t in range(2):
    if t == 1:
        k(f"v_mov_b32 v{GB}, v44\nv_mov_b32 v{GB+1}, v45")
    for hf in range(2):
        if hf == 1:
            cmul(GB, GB+14, E[8], conj=True)
        for i in range(1, 8):
            cmul(GB+2*i, GB+2*i-2, E[8], conj=True)
        pack8([(f"v{GB+2*i}", f"v{GB+2*i+1}") for i in range(8)], hf)
    tile_reads(t)
def mk(l, a_, b_):
    assert a_ + b_ == l
    cmul(newE(l), E[a_], E[b_])
def ev(l):
    return ("1.0", "0") if l == 0 else (f"v{E[l]}", f"v{E[l]+1}")
mk(2,1,1); mk(3,2,1); mk(4,2,2); mk(5,4,1); mk(6,4,2); mk(7,4,3)
pack8([ev(l) for l in range(8)], 0)
mk(256,128,128); mk(258,256,2); mk(260,256,4); mk(262,256,6); mk(264,256,8)
pack8([ev(l) for l in (256,256,258,260,260,260,262,264)], 1)
tile_reads(2)
mk(512,256,256); mk(516,512,4); mk(520,512,8); mk(1024,512,512); mk(1032,1024,8); mk(1280,1024,256); mk(1288,1280,8)
pack8([ev(l) for l in (512,516,1024,1032,516,520,1280,1288)], 0)
mk(768,512,256); mk(772,768,4); mk(776,768,8); mk(1536,1024,512); mk(1544,1536,8); mk(1792,1024,768); mk(1800,1792,8)
pack8([ev(l) for l in (768,772,1536,1544,772,776,1792,1800)], 1)
tile_reads(3)
k.stamp("kchain")
k.dswait()
for s in range(4):
    for (acc, ta, tb_) in ((24,2,1),(28,3,1),(16,2,0),(20,3,0)):
        c = "0" if s == 0 else vr(acc,4)
        k(f"v_mfma_f32_16x16x32_bf16 {vr(acc,4)}, {ar(FR+16*ta+4*s,4)}, {ar(FR+16*tb_+4*s,4)}, {c}")
k(f"""
s_lshl_b32 s78, s{WV}, 14
v_add_u32 v32, s78, v{AX}
v_add_u32 v33, s78, v{AX+1}
v_add_u32 v34, s78, v{AX+2}
v_add_u32 v35, s78, v{AX+3}
v_add_u32 v36, {RB}, v32
v_add_u32 v37, {RB}, v33
v_add_u32 v38, {RB}, v34
v_add_u32 v39, {RB}, v35
s_lshl_b32 s78, s{WV}, 11
s_add_u32 s78, s78, {EX}
v_add_u32 v48, s78, v{L16}
s_xor_b32 s78, s{WV}, 1
s_lshl_b32 s78, s78, 11
s_add_u32 s78, s78, {EX}
v_add_u32 v49, s78, v{L16}
""")
assert EX % 4096 == 0 or True
k.ds("ds_write_b128 v48, v[24:27]")
k.ds("ds_write_b128 v48, v[28:31] offset:1024")
k.vmwait("w1")
k.stamp("w1land")
for n in range(32):
    c, i = n // 8, n % 8
    base = (36 if c < 2 else 32) + (i >> 1)
    for rd in range(2):
        k.ds(f"ds_read_b64_tr_b16 {w1reg(n, 2*rd, 2)}, v{base} offset:{(c&1)*8192 + (i&1)*1024 + rd*512}", f"w1f")
for i in range(4):
    k(f"v_mov_b32 v{56+i}, s{ONES}")
k.dswait()
k("s_barrier")
k.stamp("kbar1")
k.ds("ds_read_b128 v[24:27], v49", "ex")
k.ds("ds_read_b128 v[28:31], v49 offset:1024", "ex")
def w2_issue(gi, ldsbase_imm):
    k(f"s_add_u32 s78, s{ROT2}, {gi>>1}")
    k(f"s_cmp_ge_u32 s78, 7")
    k(f"s_cselect_b32 s79, 7, 0")
    k(f"s_sub_u32 s78, s78, s79")
    k(f"s_lshl_b32 s78, s78, 16")
    k(f"s_add_u32 m0, s89, {ldsbase_imm}")
    k(f"s_add_u32 s78, s78, s96")
    if gi & 1:
        k(f"s_add_u32 s78, s78, {2*16384}")
    for i in range(4):
        k.vm(f"buffer_load_dwordx4 v{W2V+i}, {srd(SW2)}, s78 offen offset:{1024*i} lds", f"w2_{gi}")
def w2_read(gi, areg, off):
    for kk in range(2):
        for t in range(2):
            for rd in range(2):
                k.ds(f"ds_read_b64_tr_b16 {ar(8*(2*gi+kk)+4*t+2*rd,2)}, v{areg} offset:{off + (2*kk+rd)*1024 + t*512}", "w2f")
k(f"""
s_lshl_b32 s89, s{WV}, 14
s_mul_i32 s96, s{WV}, {28*16384}
s_lshl_b32 s78, s{DT}, 7
s_add_u32 s96, s96, s78
v_add_u32 v13, s89, v{LP}
""")
for gi in range(4):
    w2_issue(gi, RA + gi*4096)
k(f"""
v_lshrrev_b32 v40, 5, v0
v_mul_u32_u24 v40, {UCS}, v40
v_and_b32 v41, 31, v0
v_lshl_add_u32 v40, v41, 4, v40
v_add_u32 v40, {UC+16+4080}, v40
v_lshrrev_b32 v42, 2, v41
v_mul_u32_u24 v42, {KCS}, v42
v_and_b32 v43, 3, v0
v_min_u32 v43, 2, v43
v_lshl_add_u32 v42, v43, 4, v42
v_add_u32 v42, {KC}, v42
v_cmp_gt_u32 vcc, 128, v0
v_mov_b32 v60, 0
v_mov_b32 v61, 0
v_cndmask_b32 v40, v42, v40, vcc
v_mov_b32 v62, 0
v_mov_b32 v63, 0
""")
k.ds("ds_write_b128 v40, v[60:63]")
k(f"""
s_lshr_b32 s78, s{WV}, 1
s_mul_i32 s78, s78, {KCH}
s_and_b32 s79, s{WV}, 1
s_lshl_b32 s79, s79, 8
s_add_u32 s78, s78, s79
s_add_u32 s78, s78, {KC + 3*KCS + 48}
v_and_b32 v41, 15, v{LANE}
v_lshl_add_u32 v41, v41, 4, s78        ; base + 16b
v_lshrrev_b32 v42, 5, v{LANE}
v_lshl_add_u32 v42, v42, 9, v41
v_bfe_u32 v43, v{LANE}, 4, 1
v_lshl_add_u32 v42, v43, 3, v42        ; T1
v_lshrrev_b32 v43, 4, v{LANE}
v_lshl_add_u32 v43, v43, 9, v41        ; T2 (imm +2048)
s_mov_b32 s92, 0xffff0000
s_mov_b32 s93, 0xffff0000
s_mov_b32 s94, 0xaaaaaaaa
s_mov_b32 s95, 0xaaaaaaaa
""")
k.dswait("ex")
k(f"""
v_pk_add_f32 v[16:17], v[16:17], v[24:25]
v_pk_add_f32 v[18:19], v[18:19], v[26:27]
v_pk_add_f32 v[20:21], v[20:21], v[28:29]
v_pk_add_f32 v[22:23], v[22:23], v[30:31]
v_cvt_pk_bf16_f32 v24, v16, v17
v_cvt_pk_bf16_f32 v25, v18, v19
v_cndmask_b32 v16, v20, v21, s[92:93]
v_cndmask_b32 v17, v22, v23, s[94:95]
v_cvt_pk_bf16_f32 v26, v20, v20
v_cvt_pk_bf16_f32 v27, v16, v21
v_cvt_pk_bf16_f32 v28, v22, v22
v_cvt_pk_bf16_f32 v29, v22, v22
v_cvt_pk_bf16_f32 v30, v17, v23
v_cvt_pk_bf16_f32 v31, v23, v23
""")
k.ds("ds_write_b64 v42, v[24:25]")
k.ds("ds_write_b64 v42, v[26:27] offset:1024")
k.ds("ds_write_b128 v43, v[28:31] offset:2048")
k(f"""
v_lshrrev_b32 v40, 7, v0
v_mul_u32_u24 v40, {KCH}, v40
v_and_b32 v41, 127, v0
v_lshl_add_u32 v40, v41, 5, v40
v_add_u32 v40, {KC+40}, v40
""")
k.dswait()
k("s_barrier")
k.stamp("kbar2")
D = 14
k.ds(f"ds_read_b64 v[16:17], v40 offset:{3*KCS}")
k.ds(f"ds_read_b128 v[18:21], v40 offset:{3*KCS+8}")
k.ds(f"ds_read_b128 v[22:25], v40 offset:{3*KCS+24}")
for n in range(32):
    c = "0" if n == 0 else vr(CS,16)
    k(f"v_mfma_f32_32x32x16_bf16 {vr(CS,16)}, {w1reg(n)}, v[56:59], {c}")
    if n == 3:
        k.dswait()
        for i in range(8):
            k(f"v_alignbit_b32 v{28+i}, v{D+4+i}, v{D+3+i}, 16")
        k.ds(f"ds_write_b128 v40, v[28:31] offset:{2*KCS+8}")
        k.ds(f"ds_write_b128 v40, v[32:35] offset:{2*KCS+24}")
    if n == 5:
        for i in range(8):
            k(f"v_alignbit_b32 v{44+i}, v{D+3+i}, v{D+2+i}, 16")
        k.ds(f"ds_write_b128 v40, v[44:47] offset:{8}")
        k.ds(f"ds_write_b128 v40, v[48:51] offset:{24}")
    if n == 7:
        for i in range(4):
            k(f"v_pk_mov_b32 {vr(60+2*i,2)}, {vr(D+2+2*i,2)}, {vr(D+4+2*i,2)} op_sel:[1,0]")
        k.ds(f"ds_write_b128 v40, v[60:63] offset:{KCS+8}")
        k.ds(f"ds_write_b128 v40, v[64:67] offset:{KCS+24}")
k.stamp("kdone")
k(f"""
v_lshlrev_b32 v68, 4, v0                 ; tid*16
v_lshrrev_b32 v69, 2, v0
v_lshlrev_b32 v70, 6, v69
v_and_b32 v71, 1, v0
v_lshl_add_u32 v70, v71, 5, v70
s_lshl_b32 s84, s2, 14
s_mov_b32 s97, 0
""")
k.label("Lpoll")
PX = 72
for it in range(4):
    k(f"s_add_u32 s78, s84, {XT + it*4096}")
    k(f"s_mov_b32 s79, {ST + it*4096}")
    k.vm(f"buffer_load_dwordx4 {vr(PX+12*it,4)}, v68, {srd(SWS)}, s78 offen sc1")
    k.vm(f"buffer_load_dwordx4 {vr(PX+12*it+4,4)}, v70, {srd(SWS)}, s79 offen sc1")
    k.vm(f"buffer_load_dwordx4 {vr(PX+12*it+8,4)}, v70, {srd(SWS)}, s79 offen offset:16 sc1")
k("s_add_u32 s97, s97, 1")
k.vmwait()
for it in range(4):
    k(f"v_cmpx_eq_u64 vcc, s[{TAG}:{TAG+1}], {vr(PX+12*it+2,2)}")
    k(f"v_cmpx_eq_u32 vcc, s{TAG}, v{PX+12*it+7}")
    k(f"v_cmpx_eq_u32 vcc, s{TAG}, v{PX+12*it+11}")
k(f"""
s_cmp_eq_u64 exec, -1
s_mov_b64 exec, -1
s_cbranch_scc1 Lpolldone
s_cmp_lt_u32 s97, {SPIN}
s_cbranch_scc1 Lpoll
""")
k.label("Lpolldone")
k.stamp("sync1")
k(f"""
v_bfe_u32 v16, v0, 1, 1                  ; ch
v_lshlrev_b32 v17, 4, v69
v_lshl_add_u32 v17, v71, 3, v17
v_mul_u32_u24 v18, {UCH}, v16
v_sub_u32 v18, v18, v17
v_add_u32 v18, {UC+16+1008}, v18         ; vU
v_lshl_add_u32 v19, v16, 12, v17
v_add_u32 v19, {XC}, v19                 ; vXC
""")
for it in range(4):
    X = PX + 12*it
    k.ds(f"ds_write_b64 v19, {vr(X,2)} offset:{1024*it}")
    O = 20 + 2*(it & 1)
    for d in range(2):
        Gr = X + 4 + 4*d
        unpack(24, X+d)
        unpack(26, Gr+2)
        k(f"v_pk_add_f32 v[24:25], v[24:25], v[26:27] neg_lo:[0,1] neg_hi:[0,1]")
        k(f"v_cvt_pk_bf16_f32 v26, v24, v25")
        unpack(24, 26)
        k(f"v_pk_mul_f32 v[24:25], v[24:25], {vr(Gr,2)}")
        k(f"v_cvt_pk_bf16_f32 v{O+1-d}, v25, v24")
    k.ds(f"ds_write_b64 v18, {vr(O,2)} offset:{1024*(3-it)}")
    k.ds(f"ds_write_b64 v18, {vr(O,2)} offset:{1024*(3-it) + UCS + 8}")
k(f"""
s_lshr_b32 s78, s{WV}, 1                 ; ch
s_and_b32 s79, s{WV}, 1
s_lshl_b32 s79, s79, 8                   ; 64*rho0
s_mul_i32 s81, s78, {KCH}
s_add_u32 s81, s81, s79
s_add_u32 s81, s81, {KC}
s_mul_i32 s83, s78, {UCH}
s_add_u32 s83, s83, s79
s_add_u32 s83, s83, {UC+16+448}
v_and_b32 v28, 3, v{LANE}
v_mul_u32_u24 v28, {KCS}, v28
v_bfe_u32 v29, v{LANE}, 2, 2
v_lshrrev_b32 v30, 4, v{LANE}            ; g
v_add_u32 v29, v29, v30
v_lshl_add_u32 v28, v29, 4, v28
v_add_u32 v14, s81, v28                  ; A address
v_and_b32 v28, 1, v{LANE}
v_mul_u32_u24 v28, {UCS}, v28
v_lshl_add_u32 v28, v30, 4, v28
v_bfe_u32 v29, v{LANE}, 1, 3
v_lshlrev_b32 v29, 6, v29
v_sub_u32 v28, v28, v29
v_add_u32 v15, s83, v28                  ; B address
""")
k.dswait()
k("s_barrier")
k(f"""
s_or_b32 s78, s2, s{WV}
s_cmp_lg_u32 s78, 0
s_cbranch_scc1 Lnoep
v_mov_b32 v28, s{TAG}
v_mov_b32 v29, {EP}
s_mov_b64 exec, 1
buffer_store_dword v28, v29, {srd(SWS)}, 0 offen
s_mov_b64 exec, -1
""")
k.label("Lnoep")
k.stamp("ubar")
if DUMPK:
    k(f"s_lshl_b32 s78, s2, 16\ns_add_u32 s78, s78, {DBG}\nv_lshlrev_b32 v28, 4, v0\nv_add_u32 v29, {RB}, v28")
    for i in range(16):
        k(f"ds_read_b128 v[32:35], v29 offset:{4096*i}\ns_waitcnt lgkmcnt(0)")
        k(f"buffer_store_dwordx4 v[32:35], v28, {srd(SWS)}, s78 offen\ns_add_u32 s78, s78, 4096\ns_waitcnt vmcnt(0)")
for gi in range(4):
    w2_read(gi, 13, RA + gi*4096)
k.dswait()
for gi in range(4, 8):
    w2_issue(gi, RA + (gi-4)*4096)
ACC = 80
def cfr(buf, kind, idx):
    o = (0 if kind == "A" else 32) + 4*idx
    return vr(16+o, 4) if buf == 0 else ar(128+o, 4)
def conv_reads(rp, nfr):
    buf = rp & 1
    out = []
    for i in range(nfr):
        out.append((f"ds_read_b128 {cfr(buf,'A',i)}, v14 offset:{512*i + 64*rp}", f"cA{rp}_{i}"))
        out.append((f"ds_read_b128 {cfr(buf,'B',i)}, v15 offset:{512*(7-i) + 64*rp}", f"cB{rp}_{i}"))
    return out
def conv_half(hf):
    nfr = 4 if hf == 0 else 8
    pairs = [(a_, c_) for a_ in range(nfr) for c_ in range(nfr) if 4*hf <= a_ + c_ <= 4*hf + 3]
    pairs.sort(key=lambda p: (max(p), p[0]+p[1]))
    for ins, tg in conv_reads(0, nfr): k.ds(ins, tg)
    first = set()
    for rp in range(4):
        nxt_ = conv_reads(rp+1, nfr) if rp < 3 else []
        for (a_, c_) in pairs:
            m = max(a_, c_)
            k.dswait(f"cB{rp}_{m}")
            n = a_ + c_ - 4*hf
            cc = vr(ACC+4*n,4) if n in first else "0"
            first.add(n)
            k(f"v_mfma_f32_16x16x32_bf16 {vr(ACC+4*n,4)}, {cfr(rp&1,'A',c_)}, {cfr(rp&1,'B',a_)}, {cc}")
            if nxt_:
                ins, tg = nxt_.pop(0); k.ds(ins, tg)
        for ins, tg in nxt_: k.ds(ins, tg)
QS = 320; TS = 4*QS
WS_ = 4*TS
CPH = 4*WS_ + 64
assert 2*CPH <= 49152
def conv_epi(hf):
    base = CP + hf*0
assert True
QS = 256; TS = 1024; WS_ = 4096; CPH = 16384
k(f"""
s_lshl_b32 s78, s{WV}, 12
s_add_u32 s78, s78, {CP}
v_add_u32 v96, s78, v{L16}
v_lshrrev_b32 v97, 6, v0
v_lshlrev_b32 v97, 10, v97               ; tile*1024
v_and_b32 v98, 3, v0
v_lshl_add_u32 v97, v98, 8, v97          ; + q*256
v_bfe_u32 v99, v0, 3, 3
v_lshl_add_u32 v97, v99, 5, v97          ; + (tb'&7)*32
v_bfe_u32 v99, v0, 2, 1                  ; ch
v_lshl_add_u32 v97, v99, 13, v97         ; + ch*8192
v_add_u32 v97, {CP}, v97
v_lshrrev_b32 v100, 3, v0
v_lshlrev_b32 v100, 6, v100
v_lshl_add_u32 v100, v98, 4, v100
v_lshl_add_u32 v101, v99, 12, v100
v_add_u32 v101, {XC}, v101
v_mul_u32_u24 v102, {UCH}, v99
v_sub_u32 v102, v102, v100
v_add_u32 v102, {UC + UCS + 16 + 2*2040 - 2048}, v102
s_lshl_b32 s78, s71, 16
s_and_b32 s79, s71, s{MASK}
v_mov_b32 v104, s78
v_mov_b32 v105, s79
v_cmp_eq_u32 vcc, 1, v99
s_nop 1
v_cndmask_b32 v104, v104, v105, vcc      ; Dskip
""")
def conv_epi(hf):
    k("s_nop 7")
    for n in range(4):
        k.ds(f"ds_write_b128 v96, {vr(ACC+4*n,4)} offset:{hf*CPH + 1024*n}")
    k.ds(f"ds_read_b128 v[124:127], v102 offset:{(1-hf)*2048}")
    k.ds(f"ds_read_b128 v[128:131], v101 offset:{hf*2048}")
    k.dswait()
    k("s_barrier")
    k.ds(f"ds_read_b128 v[108:111], v97 offset:{hf*CPH}")
    k.ds(f"ds_read_b128 v[112:115], v97 offset:{hf*CPH+16}")
    k.ds(f"ds_read_b128 v[116:119], v97 offset:{hf*CPH+4096}")
    k.ds(f"ds_read_b128 v[120:123], v97 offset:{hf*CPH+4096+16}")
    for i in range(4):
        unpack(132, 127-i)
        k(f"v_pk_mul_f32 v[132:133], v[132:133], v[104:105] op_sel_hi:[1,0]")
        k(f"v_cvt_pk_bf16_f32 v{127-i}, v133, v132")
    k.dswait()
    for i in range(4):
        k(f"v_pk_add_f32 {vr(108+2*i,2)}, {vr(108+2*i,2)}, {vr(116+2*i,2)}")
        k(f"v_cvt_pk_bf16_f32 v134, v{108+2*i}, v{109+2*i}")
        unpack(132, 134)
        unpack(134, 127-i)
        k(f"v_pk_add_f32 v[132:133], v[132:133], v[134:135]")
        k(f"v_cvt_pk_bf16_f32 v134, v132, v133")
        unpack(132, 134)
        unpack(134, 128+i)
        k(f"v_pk_add_f32 v[132:133], v[132:133], v[134:135]")
        k(f"v_cvt_pk_bf16_f32 v{136+i}, v132, v133")
    k.vm(f"buffer_store_dwordx4 v[136:139], v{VHT}, {srd(SWS)}, s{86+hf} offen sc1", f"hst{hf}")
def h_issue(hf):
    base = RA if hf == 0 else RB
    k(f"s_and_b32 s79, s{WV}, 1")
    k(f"s_lshl_b32 s81, s{RG}, 1")
    k(f"s_add_u32 s81, s81, s79")
    k(f"s_lshl_b32 s81, s81, 15")
    k(f"s_add_u32 s81, s81, {HT + hf*0x100000}")
    k(f"s_lshl_b32 s79, s79, 15")
    k(f"s_lshr_b32 s83, s{WV}, 1")
    k(f"s_lshl_b32 s84, s83, 12")
    k(f"s_add_u32 s79, s79, s84")
    k(f"s_add_u32 s83, s83, s{ROT1}")
    for c in range(4):
        k(f"s_add_u32 s78, s83, {2*c}")
        k(f"s_and_b32 s78, s78, 7")
        k(f"s_lshl_b32 s78, s78, 12")
        k(f"s_add_u32 m0, s79, {base + c*8192}")
        k(f"s_add_u32 s78, s78, s81")
        for i in range(4):
            k.vm(f"buffer_load_dwordx4 v{L16}, {srd(SWS)}, s78 offen offset:{1024*i} sc1 lds", f"h{hf}_{c}")
conv_half(0)
k.stamp("conv0")
conv_epi(0)
k.stamp("cepi0")
conv_half(1)
k.stamp("conv1")
k.vmwait("w2_7")
for gi in range(4, 8):
    w2_read(gi, 13, RA + (gi-4)*4096)
conv_epi(1)
k.stamp("cepi1")
h_issue(0)
k("s_barrier")
G1A = 16
BF = 48
SS = 72
def g1(hf):
    rb = RA if hf == 0 else RB
    L = f"Lg1_{hf}"
    k(f"s_mov_b32 s97, 0")
    k.label(L)
    for i in range(4):
        k(f"v_mov_b32 v{SS+i}, 0")
    def reads(n):
        c, i = n // 8, n % 8
        if i == 0:
            k.vmwait(f"h{hf}_{c}")
            k("s_barrier")
        for tb in range(2):
            for rd in range(2):
                k.ds(f"ds_read_b64_tr_b16 {vr(BF+8*(n%3)+4*tb+2*rd,2)}, v{AX+(i>>1)} offset:{tb*32768 + c*8192 + (i&1)*1024 + rd*512}", f"b{n}")
    reads(0); reads(1)
    for n in range(32):
        if n + 2 < 32: reads(n+2)
        k.dswait(f"b{n}")
        for tb in range(2):
            cc = "0" if n == 0 else vr(G1A+16*tb,16)
            k(f"v_mfma_f32_32x32x16_bf16 {vr(G1A+16*tb,16)}, {w1reg(n)}, {vr(BF+8*(n%3)+4*tb,4)}, {cc}")
            if n % 8 < 2:
                for d in range(4):
                    r = BF+8*(n%3)+4*tb+d
                    k(f"v_dot2_f32_bf16 v{SS+tb}, v{r}, s{ONES}, v{SS+tb}")
                    k(f"v_dot2_f32_bf16 v{SS+2+tb}, v{r}, v{r}, v{SS+2+tb}")
        if n == 12 and hf == 0:
            h_issue(1)
        if n == 25:
            k("s_nop 2")
            k(f"s_lshl_b32 s78, s{WV}, 10")
            k(f"s_add_u32 s78, s78, {G1X + hf*4096}")
            k(f"v_add_u32 v76, s78, v{L16}")
            k.ds(f"ds_write_b128 v76, {vr(SS,4)}", "sx")
        if n == 26:
            k.dswait("sx")
            k("s_barrier")
            k(f"v_and_b32 v76, 0x1f0, v{L16}")
            k(f"v_add_u32 v76, {G1X + hf*4096}, v76")
            for j in range(8):
                k.ds(f"ds_read_b128 {vr(80+4*j,4)}, v76 offset:{512*j}", "sr")
        if n == 29:
            k.dswait("sr")
            for j in range(1, 8):
                k(f"v_pk_add_f32 v[80:81], v[80:81], {vr(80+4*j,2)}")
                k(f"v_pk_add_f32 v[82:83], v[82:83], {vr(82+4*j,2)}")
            k(f"v_cmp_u_f32 vcc, v82, v83")
            k(f"s_mov_b64 s[92:93], vcc")
            stats_finish(80, 82, 84, 85, 86)
            unpack(88, 85)
    k(f"s_cmp_eq_u64 s[92:93], 0")
    k(f"s_cbranch_scc1 {L}_ok")
    k(f"s_add_u32 s97, s97, 1")
    k(f"s_cmp_ge_u32 s97, {SPIN//10}")
    k(f"s_cbranch_scc1 {L}_ok")
    k("s_barrier")
    sv = list(k.vq)
    h_issue(hf)
    k("s_waitcnt vmcnt(0)")
    k.vq = sv
    k(f"s_branch {L}")
    k.label(f"{L}_ok")
    k("s_nop 7\ns_nop 3")
    for tb in range(2):
        k(f"s_add_u32 s78, s88, {(32*hf+tb)*114688}")
        for fr in range(2):
            O = 90 + 4*fr + 8*tb + 2
            for d in range(4):
                r = G1A + 16*tb + 8*fr + 2*d
                k(f"v_pk_fma_f32 {vr(r,2)}, v[88:89], {vr(CS+8*fr+2*d,2)}, {vr(r,2)} op_sel:[{tb},0,0] op_sel_hi:[{tb},1,1] neg_lo:[1,0,0] neg_hi:[1,0,0]")
                k(f"v_pk_mul_f32 {vr(r,2)}, {vr(r,2)}, v[86:87] op_sel:[0,{tb}] op_sel_hi:[1,{tb}]")
                k(f"v_cvt_pk_bf16_f32 v{O+d}, v{r}, v{r+1}")
                k(f"v_pk_max_i16 v{O+d}, v{O+d}, 0")
            k.vm(f"buffer_store_dwordx4 {vr(O,4)}, v{L16}, {srd(SH1)}, s78 offen offset:{1024*fr} sc1", f"h1st{hf}")
k(f"s_lshl_b32 s89, s{WV}, 12")
k(f"v_add_u32 v14, s89, v{LP}")
k(f"v_add_u32 v14, {RC}, v14")
w2_issue(8, RC)
g1(0)
k.stamp("g1_0")
k.vmwait("w2_8")
w2_read(8, 14, 0)
k.dswait()
w2_issue(9, RC)
k("s_barrier")
k(f"s_lshl_b32 s89, s{WV}, 14")
for gi in range(10, 14):
    w2_issue(gi, RA + (gi-10)*4096)
for i in range(4):
    k(f"v_add_u32 v{AX+i}, {RB}, v{AX+i}")
g1(1)
k.stamp("g1_1")
k.vmwait("w2_13")
w2_read(9, 14, 0)
for gi in range(10, 14):
    w2_read(gi, 13, RA + (gi-10)*4096)
G2A = 16
ID = 48
RF = 56
k(f"""
v_and_b32 v60, 31, v{LANE}
v_lshrrev_b32 v61, 5, v{LANE}
v_lshlrev_b32 v61, 2, v61
v_sub_u32 v60, v60, v61
s_lshl_b32 s78, s{WV}, 4
v_subrev_u32 v60, s78, v60               ; row - 4g - 16w
v_ashrrev_i32 v60, 1, v60
v_and_b32 v61, 1, v{LANE}
v_lshlrev_b32 v61, 4, v61
v_mov_b32 v62, 0x3f80
v_lshlrev_b32 v61, v61, v62
""")
for t in range(2):
    for m, lo in enumerate((0, 2, 8, 10)):
        k(f"v_cmp_eq_i32 vcc, {lo//2 - 16*t}, v60")
        k("s_nop 1")
        k(f"v_cndmask_b32 v{ID+4*t+m}, 0, v61, vcc")
k(f"""
s_mul_i32 s98, s{RG2}, 114688
s_mul_i32 s78, s{WV}, {28*1024}
s_add_u32 s98, s98, s78
s_add_u32 s98, s98, {H1F}
s_lshl_b32 s99, s{RG2}, 15
s_lshl_b32 s78, s{DT}, 12
s_add_u32 s99, s99, s78
s_lshl_b32 s78, s{WV}, 10
s_add_u32 s99, s99, s78
s_add_u32 s99, s99, {HT}
s_add_u32 s100, s78, {RES}
v_add_u32 v63, s100, v{LP}
s_mul_i32 s78, s{WV}, {8*PS}
v_add_u32 v64, s78, v{L16}
""")
k.dswait()
k("s_barrier")
k.stamp("g2start")
def g2(hf):
    L = f"Lg2_{hf}"
    k("s_mov_b32 s97, 0")
    k.label(L)
    k(f"s_add_u32 m0, s100, {hf*4096}")
    k(f"s_add_u32 s78, s99, {hf*0x100000}")
    k.vm(f"buffer_load_dwordx4 v{L16}, {srd(SWS)}, s78 offen sc1 lds", "res")
    for g4 in range(7):
        k(f"s_add_u32 s78, s{ROT2}, {g4}")
        k(f"s_cmp_ge_u32 s78, 7")
        k(f"s_cselect_b32 s79, 7, 0")
        k(f"s_sub_u32 s78, s78, s79")
        k(f"s_lshl_b32 s78, s78, 12")
        k(f"s_add_u32 s78, s78, s98")
        if hf: k(f"s_add_u32 s78, s78, {32*114688}")
        for i in range(4):
            k.vm(f"buffer_load_dwordx4 {w1reg(4*g4+i)}, v{L16}, {srd(SWS)}, s78 offen offset:{1024*i} sc1", f"f{4*g4+i}")
    k.vmwait("res")
    for rd in range(2):
        k.ds(f"ds_read_b64_tr_b16 {vr(RF+2*rd,2)}, v63 offset:{hf*4096 + rd*512}")
    k.dswait()
    for t in range(2):
        k(f"v_mfma_f32_32x32x16_bf16 {vr(G2A+16*t,16)}, {vr(ID+4*t,4)}, {vr(RF,4)}, 0")
    for pos in range(28):
        k.vmwait(f"f{pos}")
        for t in range(2):
            k(f"v_mfma_f32_32x32x16_bf16 {vr(G2A+16*t,16)}, {ar(8*pos+4*t,4)}, {w1reg(pos)}, {vr(G2A+16*t,16)}")
    k("s_nop 7\ns_nop 3")
    k(f"v_cmp_u_f32 vcc, v{G2A}, v{G2A+16}")
    k(f"s_cbranch_vccz {L}_ok")
    k(f"s_add_u32 s97, s97, 1")
    k(f"s_cmp_lt_u32 s97, {SPIN//10}")
    k(f"s_cbranch_scc1 {L}")
    k.label(f"{L}_ok")
    for j in range(8):
        k.ds(f"ds_write_b128 v64, {vr(G2A+4*j,4)} offset:{hf*32*PS + j*PS}")
g2(0)
k.stamp("g2_0")
g2(1)
k.stamp("g2_1")
k(f"""
v_and_b32 v65, 7, v0
v_mul_u32_u24 v66, {PS}, v65
v_lshrrev_b32 v67, 3, v0
v_lshl_add_u32 v66, v67, 4, v66
v_lshlrev_b32 v67, 10, v67
v_lshl_add_u32 v67, v65, 4, v67
s_lshl_b32 s78, s{RG2}, 15
s_lshl_b32 s79, s{DT}, 7
s_add_u32 s78, s78, s79
s_add_u32 s79, s78, 0x100000
""")
k.dswait()
k("s_barrier")
for hf in range(2):
    for w in range(4):
        for g in range(2):
            k.ds(f"ds_read_b128 {vr(72+32*hf+8*w+4*g,4)}, v66 offset:{(hf*4+w)*8*PS + g*512}", f"p{hf}")
for hf in range(2):
    k.dswait(f"p{hf}")
    B = 72 + 32*hf
    for i in range(4):
        k(f"v_pk_add_f32 {vr(B+2*i,2)}, {vr(B+2*i,2)}, {vr(B+8+2*i,2)}")
        k(f"v_pk_add_f32 {vr(B+16+2*i,2)}, {vr(B+16+2*i,2)}, {vr(B+24+2*i,2)}")
        k(f"v_pk_add_f32 {vr(B+2*i,2)}, {vr(B+2*i,2)}, {vr(B+16+2*i,2)}")
        k(f"v_cvt_pk_bf16_f32 v{16+4*hf+i}, v{B+2*i}, v{B+2*i+1}")
    k.vm(f"buffer_store_dwordx4 {vr(16+4*hf,4)}, v67, {srd(SOUT)}, s{78+hf} offen")
if DIAG:
    k("s_waitcnt vmcnt(0)")
    k.stamp("end")
    k("s_memrealtime s[92:93]")
    k.flush_stamps()
    k(f"v_writelane_b32 v{k.VSTAMP}, s14, 62")
    k(f"v_writelane_b32 v{k.VSTAMP}, s92, 63")
    k(f"s_lshl_b32 s78, s2, 10\ns_add_u32 s78, s78, {STAMPS}\nv_lshlrev_b32 v16, 2, v0")
    k(f"buffer_store_dword v{k.VSTAMP}, v16, {srd(SWS)}, s78 offen")
    open("stampnames.txt", "w").write("\n".join(k.stampnames))
k.label("Lend")
k("s_endpgm")
open(OUT, "w").write(single_file(k.text(), 256, 256, 163840, 512, sgpr=102, accum=256))
```

```python
import sys, struct
from kb import *
DIAG = "diag" in sys.argv
OUT = [x for x in sys.argv[1:] if x.endswith(".s")][0]
def opt(name, default):
    for a in sys.argv:
        if a.startswith(name + "="): return int(a.split("=")[1])
    return default
def f2h(x): return hex(struct.unpack('<I', struct.pack('<f', float(x)))[0])

XT, HT, H1F, ST, EP, STAMPS = 0x0, 0x400000, 0x600000, 0xD00000, 0xD10000, 0xE00000
CF = 0xD08000
RA, RB, RC = 0, 65536, 131072
KC = RB; KCS = 4160; KCH = 4*KCS
UC = RB + 2*KCH; UCS = 4640; UCH = 2*UCS
XC = UC + 2*UCH
assert XC + 8192 <= RC
SCR = RC; SCW = 4352; SCH = 2176
EX = RC + 4*SCW
STG = EX + 8192
CP = RC; CPH = 16384
G1X = RC + 16384
QX = RC + 24576
SXX = QX + 2048
SPIN = 200000

k = K(DIAG); k.VSTAMP = 143
TID, L16, VHT, LP, AX, W2V, LANE, RD2, CVA, CVB = 0, 1, 2, 3, 4, 8, 12, 13, 14, 15
RD0, T16, VU, VXC, PW, PR, XR, UR, DSK, ONE, W1V, VMASK, RDC = 108, 110, 111, 112, 113, 114, 115, 116, 118, 120, 124, 117, 128
CS = 144
def w1reg(n, off=0, cnt=4):
    return vr(160+4*n+off, cnt) if n < 24 else ar(224+4*(n-24)+off, cnt)
WV = 3
SWS, SX, SW1, SW2, SOUT, SH1 = 44, 48, 52, 56, 60, 64
TAG = 68
RG, FT, RG2, DT, ROT1, ROT2 = 72, 73, 74, 75, 76, 77
MASK, ONES = 80, 82
HST = 86
H1B = 88
RBK = 89
TW1, TW2 = 16, 24
RING = 38
SRC = 100
SRU = 96
RDU = 141
HB1 = 90
def srd(r): return f"s[{r}:{r+3}]"

def cmul_a(d, x, y, negim=False):
    return f"v_pk_mul_f32 {vr(d,2)}, {vr(x,2)}, {vr(y,2)} op_sel:[0,0] op_sel_hi:[1,0]" + (" neg_hi:[1,0]" if negim else "")
def cmul_b(d, x, y, conj=False, negim=False):
    m = "neg_lo:[1,0,0] neg_hi:[1,0,0]" if negim else ("neg_hi:[1,0,0]" if conj else "neg_lo:[1,0,0]")
    return f"v_pk_fma_f32 {vr(d,2)}, {vr(x,2)}, {vr(y,2)}, {vr(d,2)} op_sel:[1,1,0] op_sel_hi:[0,1,1] {m}"
def cmul(d, x, y, conj=False, negim=False):
    k(cmul_a(d, x, y, negim)); k(cmul_b(d, x, y, conj, negim))
def cmulN(lst, conj=False):
    for (d, x, y) in lst: k(cmul_a(d, x, y))
    for (d, x, y) in lst: k(cmul_b(d, x, y, conj))
def unpack(d, s):
    k(f"v_and_b32 v{d+1}, s{MASK}, v{s}")
    k(f"v_lshlrev_b32 v{d}, 16, v{s}")
def stats_finish(S, Q, T, MB, R):
    k(f"s_mov_b32 s78, 0x3b000000")
    k(f"s_mov_b32 s79, 0x3b000000")
    k(f"v_pk_mul_f32 {vr(S,2)}, {vr(S,2)}, s[78:79]")
    k(f"v_pk_mul_f32 {vr(Q,2)}, {vr(Q,2)}, s[78:79]")
    k(f"v_pk_fma_f32 {vr(Q,2)}, {vr(S,2)}, {vr(S,2)}, {vr(Q,2)} neg_lo:[1,0,0] neg_hi:[1,0,0]")
    k(f"v_cvt_pk_bf16_f32 v{MB}, v{S}, v{S+1}")
    k(f"v_cvt_pk_bf16_f32 v{T}, v{Q}, v{Q+1}")
    k(f"v_pk_max_i16 v{T}, v{T}, 0")
    unpack(Q, T)
    k(f"v_add_f32 v{Q}, 0x3727c5ac, v{Q}")
    k(f"v_add_f32 v{Q+1}, 0x3727c5ac, v{Q+1}")
    k(f"v_cvt_pk_bf16_f32 v{T}, v{Q}, v{Q+1}")
    unpack(Q, T)
    k(f"v_sqrt_f32 v{Q}, v{Q}")
    k(f"v_sqrt_f32 v{Q+1}, v{Q+1}")
    k("s_nop 0")
    k(f"v_cvt_pk_bf16_f32 v{T}, v{Q}, v{Q+1}")
    unpack(Q, T)
    k(f"v_rcp_f32 v{R}, v{Q}")
    k(f"v_rcp_f32 v{R+1}, v{Q+1}")
    k("s_nop 0")

slot_last = {}
def w_issue(kind, g, slot):
    th = []
    def first():
        if slot in slot_last: k.dswait(slot_last[slot])
        if slot in ('U0', 'U1'): k(f"s_add_u32 m0, s{SRU}, {4096*int(slot[1])}")
        else: k(f"s_mov_b32 m0, s{SRC if slot == 'C' else RING+slot}")
    th.append(first)
    for i in range(4):
        if kind == 1:
            th.append(lambda i=i: k.vm(f"buffer_load_dwordx4 v{W1V+i}, {srd(SW1)}, s{TW1+g} offen offset:{1024*i} lds", f"w1_{g}"))
        else:
            th.append(lambda i=i: k.vm(f"buffer_load_dwordx4 v{W2V+i}, {srd(SW2)}, s{TW2+g} offen offset:{1024*i} lds", f"w2_{g}"))
    return th
def w_consume(kind, g, slot):
    th = []
    tag = f"r{kind}_{g}"
    off = 0 if slot == 'C' else (4096*int(slot[1]) if slot in ('U0','U1') else slot*4096)
    ins = []
    if kind == 1:
        for i in range(4):
            for rd in range(2):
                ins.append(f"ds_read_b64_tr_b16 {w1reg(4*g+i, 2*rd, 2)}, v{RD0+(i>>1)} offset:{off + (i&1)*1024 + rd*512}")
    else:
        areg = RDC if slot == 'C' else (RDU if slot in ('U0','U1') else RD2)
        for kk in range(2):
            for t in range(2):
                for rd in range(2):
                    ins.append(f"ds_read_b64_tr_b16 {ar(8*(2*g+kk)+4*t+2*rd,2)}, v{areg} offset:{off + (2*kk+rd)*1024 + t*512}")
    def mk(j):
        def f():
            if j == 0:
                k.vmwait(f"w{kind}_{g}")
                slot_last[slot] = tag
            k.ds(ins[j], tag)
        return f
    return [mk(j) for j in range(8)]
cs_first = [True]
def cs_mfma(g):
    def mk(i):
        def f():
            if i == 0: k.dswait(f"r1_{g}")
            c = "0" if cs_first[0] else vr(CS,16)
            cs_first[0] = False
            k(f"v_mfma_f32_32x32x16_bf16 {vr(CS,16)}, {w1reg(4*g+i)}, {vr(ONE,4)}, {c}")
        return f
    return [mk(i) for i in range(4)]
Q = [(1,0),(1,1),(2,0),(1,2),(2,1),(1,3),(2,2),(1,4),(2,3),(1,5),(1,6),(1,7),(2,4),(2,5),(2,6),(2,7)]
qi = [0]; qc = [0]
def I():
    n = qi[0]; qi[0] += 1
    return w_issue(Q[n][0], Q[n][1], n % 4)
def C():
    n = qc[0]; qc[0] += 1
    assert n < qi[0]
    return w_consume(Q[n][0], Q[n][1], n % 4)
def steps(s):
    for ch in s:
        if ch == "I": k.fillq += I()
        elif ch == "C": k.fillq += C()
        elif ch.isdigit(): k.fillq += cs_mfma(int(ch))

k.label("Lstart")
k("s_getpc_b64 s[90:91]")
k("""
s_load_dwordx16 s[16:31], s[0:1], 0
s_load_dwordx8 s[32:39], s[0:1], 64
s_load_dwordx2 s[40:41], s[0:1], 96
s_load_dwordx2 s[42:43], s[0:1], 112
s_cmp_ge_u32 s2, 256
s_cbranch_scc1 Lend
""")
if DIAG:
    k("s_memrealtime s[14:15]")
    k(f"v_mov_b32 v{k.VSTAMP}, 0")
k.stamp("start")
k(f"""
s_lshl_b32 s78, s2, 10
s_and_b32 s78, s78, 0x6000
v_lshrrev_b32 v141, 2, v0
v_and_b32 v141, 48, v141
v_and_or_b32 v141, v0, 15, v141
v_lshl_add_u32 v141, v141, 7, s78
v_min_u32 v141, Lend-Lstart-8, v141
""")
k.vm("global_load_dword v142, v141, s[90:91]", "code")
k(f"""
v_readfirstlane_b32 s{WV}, v0
v_and_b32 v{LANE}, 63, v0
v_lshlrev_b32 v{L16}, 4, v{LANE}
s_lshr_b32 s{WV}, s{WV}, 6
v_and_b32 v50, 1, v0
v_lshlrev_b32 v50, 12, v50
v_lshrrev_b32 v51, 2, v0
v_lshl_add_u32 v50, v51, 4, v50
s_lshl_b32 s78, s2, 9
v_lshl_add_u32 v52, v0, 1, s78
s_and_b32 s{RBK}, s2, 7
s_lshl_b32 s{RBK}, s{RBK}, 5
s_lshr_b32 s79, s2, 3
s_add_u32 s{RBK}, s{RBK}, s79
s_lshl_b32 s84, s{RBK}, 13
s_lshl_b32 s85, s{WV}, 11
s_add_u32 s85, s85, s84
s_mov_b32 s{SX+2}, 0x200000
s_mov_b32 s{SX+3}, 0x20000
s_waitcnt lgkmcnt(0)
s_mov_b32 s{SX}, s16
s_mov_b32 s{SX+1}, s17
""")
for i in range(4):
    k.vm(f"buffer_load_dwordx4 {vr(24+4*i,4)}, v50, {srd(SX)}, s84 offen offset:{1024*i}", "xt")
for i in range(2):
    k.vm(f"buffer_load_dwordx4 {vr(16+4*i,4)}, v{L16}, {srd(SX)}, s85 offen offset:{1024*i}", "xs")
k.stamp("karg")
k(f"""
s_mov_b32 s79, {EP}
s_load_dwordx2 s[{TAG}:{TAG+1}], s[42:43], s79
s_lshl_b32 s78, s2, 2
s_load_dword s70, s[30:31], s78
s_load_dword s71, s[32:33], s78
""")
for i in range(6):
    k.vm(f"global_load_ushort v{40+i}, v52, s[{18+2*i}:{19+2*i}]", "par")
k(f"""
s_mov_b32 s{SWS}, s42
s_mov_b32 s{SWS+1}, s43
s_mov_b32 s{SWS+2}, 0x10000000
s_mov_b32 s{SWS+3}, 0x20000
v_lshrrev_b32 v53, 3, v0
v_lshlrev_b32 v53, 15, v53
v_and_b32 v54, 7, v0
v_lshl_add_u32 v{VHT}, v54, 4, v53
v_mov_b32 v68, -1
v_mov_b32 v69, -1
v_mov_b32 v70, -1
v_mov_b32 v71, -1
s_lshl_b32 s{HST}, s2, 7
s_add_u32 s{HST}, s{HST}, {HT}
s_add_u32 s{HST+1}, s{HST}, 0x100000
""")
def clrh():
    k.vm(f"buffer_store_dwordx4 v[68:71], v{VHT}, {srd(SWS)}, s{HST} offen sc1", "clrh")
    k.vm(f"buffer_store_dwordx4 v[68:71], v{VHT}, {srd(SWS)}, s{HST+1} offen sc1", "clrh")
if not opt("clrlate", 0): clrh()
k.stamp("iss0")
k(f"""
s_mov_b32 s{MASK}, 0xffff0000
s_mov_b32 s{ONES}, 0x3f803f80
s_and_b32 s78, s2, 7          ; xcd
s_lshr_b32 s79, s2, 3         ; j
s_and_b32 s81, s79, 3         ; j&3
s_lshr_b32 s{DT}, s79, 2      ; dt = j>>2
s_lshr_b32 s{RG}, s78, 1
s_lshl_b32 s{RG}, s{RG}, 2
s_add_u32 s{RG}, s{RG}, s81
s_min_u32 s83, s{DT}, 6
s_and_b32 s{FT}, s78, 1
s_lshl_b32 s{RG2}, s{RG}, 1
s_add_u32 s{RG2}, s{RG2}, s{FT}
s_mul_i32 s{FT}, s{FT}, 7
s_add_u32 s{FT}, s{FT}, s83
s_lshl_b32 s{ROT1}, s81, 1
s_add_u32 s{ROT1}, s{ROT1}, s{DT}
s_mov_b32 s{ROT2}, s{ROT1}
s_cmp_ge_u32 s{ROT2}, 7
s_cselect_b32 s84, 7, 0
s_sub_u32 s{ROT2}, s{ROT2}, s84
s_mov_b32 s{SW1}, s36
s_mov_b32 s{SW1+1}, s37
s_mov_b32 s{SW1+2}, {512*1792*2}
s_mov_b32 s{SW1+3}, 0x20000
s_mov_b32 s{SW2}, s38
s_mov_b32 s{SW2+1}, s39
s_mov_b32 s{SW2+2}, {512*1792*2}
s_mov_b32 s{SW2+3}, 0x20000
s_mov_b32 s{SOUT}, s40
s_mov_b32 s{SOUT+1}, s41
s_mov_b32 s{SOUT+2}, 0x200000
s_mov_b32 s{SOUT+3}, 0x20000
s_mov_b32 s{SH1}, s42
s_mov_b32 s{SH1+1}, s43
s_cmp_lt_u32 s{DT}, 7
s_cselect_b32 s{SH1+2}, 0x10000000, 0
s_mov_b32 s{SH1+3}, 0x20000
v_lshrrev_b32 v53, 2, v{LANE}
v_mul_u32_u24 v{W1V}, 3584, v53
v_and_b32 v54, 3, v{LANE}
v_lshl_add_u32 v{W1V}, v54, 4, v{W1V}
v_add_u32 v{W1V+1}, {57344-1024}, v{W1V}
v_add_u32 v{W1V+2}, {2*(57344-1024)}, v{W1V}
v_add_u32 v{W1V+3}, {3*(57344-1024)}, v{W1V}
s_lshl_b32 s84, s{FT}, 8
s_lshl_b32 s85, s{WV}, 6
s_add_u32 s84, s84, s85        ; ft*256 + w*64
s_lshr_b32 s85, s{WV}, 1
s_lshl_b32 s{RING}, s{WV}, 14
s_add_u32 s{RING+1}, s{RING}, 4096
s_add_u32 s{RING+2}, s{RING}, 8192
s_add_u32 s{RING+3}, s{RING}, 12288
""")
def w1tab(g):
    k(f"s_xor_b32 s78, s85, {g}")
    k(f"s_add_u32 s78, s78, s{ROT1}")
    k(f"s_and_b32 s78, s78, 7")
    k(f"s_mul_i32 s78, s78, {4*57344}")
    k(f"s_add_u32 s{TW1+g}, s78, s84")
w1tab(0); w1tab(1)
W0 = opt("w0", 2)
if W0 >= 2: steps("I"); k.drain_fill()
for g in range(2, 8): w1tab(g)
k(f"""
s_mul_i32 s84, s{WV}, {28*16384}
s_lshl_b32 s78, s{DT}, 7
s_add_u32 s84, s84, s78
""")
for g4 in range(7):
    k(f"s_add_u32 s78, s{ROT2}, {g4}")
    k(f"s_cmp_ge_u32 s78, 7")
    k(f"s_cselect_b32 s79, 7, 0")
    k(f"s_sub_u32 s78, s78, s79")
    k(f"s_lshl_b32 s78, s78, 16")
    k(f"s_add_u32 s{TW2+2*g4}, s78, s84")
    k(f"s_add_u32 s{TW2+2*g4+1}, s{TW2+2*g4}, 32768")
k(f"""
s_lshl_b32 s78, s{FT}, 13
s_lshl_b32 s79, s{WV}, 11
s_add_u32 s78, s78, s79
s_add_u32 s78, s78, {H1F}
s_mul_i32 s{H1B}, s{RG2}, 114688
s_add_u32 s{H1B}, s{H1B}, s78
s_xor_b32 s79, s{RG2}, 1
s_mul_i32 s{HB1}, s79, 114688
s_add_u32 s{HB1}, s{HB1}, s78
s_lshl_b32 s{SRC}, s{WV}, 12
s_add_u32 s{SRC}, s{SRC}, {RC}
v_lshrrev_b32 v{LP}, 5, v{LANE}
v_lshlrev_b32 v{LP}, 8, v{LP}
v_bfe_u32 v55, v{LANE}, 2, 2
v_lshl_add_u32 v{LP}, v55, 6, v{LP}
v_bfe_u32 v55, v{LANE}, 4, 1
v_lshl_add_u32 v{LP}, v55, 5, v{LP}
v_lshl_add_u32 v{LP}, v54, 3, v{LP}
v_add_u32 v{RD2}, s{RING}, v{LP}
v_add_u32 v{RDC}, s{SRC}, v{LP}
s_and_b32 s78, s{WV}, 1
s_lshl_b32 s78, s78, 11
v_add_u32 v{RD0}, s78, v{RD2}
s_xor_b32 s78, s78, 2048
v_add_u32 v{RD0+1}, s78, v{RD2}
""")
for i in range(4):
    k(f"s_xor_b32 s78, s{WV}, {i}")
    k(f"s_lshr_b32 s79, s78, 1")
    k(f"s_lshl_b32 s79, s79, 14")
    k(f"s_and_b32 s78, s78, 1")
    k(f"s_lshl_b32 s78, s78, 11")
    k(f"s_add_u32 s78, s78, s79")
    k(f"v_add_u32 v{AX+i}, s78, v{LP}")
k(f"""
v_bfe_u32 v55, v{LANE}, 2, 3
v_lshlrev_b32 v{W2V}, 10, v55
v_lshrrev_b32 v55, 5, v{LANE}
v_lshl_add_u32 v{W2V}, v55, 6, v{W2V}
v_lshl_add_u32 v{W2V}, v54, 4, v{W2V}
v_add_u32 v{W2V+1}, 7168, v{W2V}
v_add_u32 v{W2V+2}, {2*7168}, v{W2V}
v_add_u32 v{W2V+3}, {3*7168}, v{W2V}
v_lshlrev_b32 v{T16}, 4, v0
v_mov_b32 v{VMASK}, s{MASK}
v_mov_b32 v{ONE}, s{ONES}
v_mov_b32 v{ONE+1}, s{ONES}
v_mov_b32 v{ONE+2}, s{ONES}
v_mov_b32 v{ONE+3}, s{ONES}
v_bfe_u32 v55, v0, 1, 1                  ; ch
v_lshlrev_b32 v56, 4, v51
v_and_b32 v57, 1, v0
v_lshl_add_u32 v56, v57, 3, v56
v_mul_u32_u24 v{VU}, {UCH}, v55
v_sub_u32 v{VU}, v{VU}, v56
v_add_u32 v{VU}, {UC+16+1008}, v{VU}
v_lshl_add_u32 v{VXC}, v55, 12, v56
v_add_u32 v{VXC}, {XC}, v{VXC}
v_mul_u32_u24 v53, 0x020202, v55
v_lshl_or_b32 v53, v53, 8, v53
v_add_u32 v53, 0x05040100, v53
v_lshlrev_b32 v51, 16, v51
v_lshl_add_u32 v51, v54, 4, v51
s_lshr_b32 s78, s{WV}, 1
s_and_b32 s79, s{WV}, 1
s_lshl_b32 s79, s79, 8
s_mul_i32 s81, s78, {KCH}
s_add_u32 s81, s81, s79
s_add_u32 s81, s81, {KC}
s_mul_i32 s83, s78, {UCH}
s_add_u32 s83, s83, s79
s_add_u32 s83, s83, {UC+16+448}
v_mul_u32_u24 v55, {KCS}, v54
v_bfe_u32 v56, v{LANE}, 2, 2
v_lshrrev_b32 v57, 4, v{LANE}
v_add_u32 v56, v56, v57
v_lshl_add_u32 v55, v56, 4, v55
v_add_u32 v{CVA}, s81, v55
v_and_b32 v55, 1, v{LANE}
v_mul_u32_u24 v55, {UCS}, v55
v_lshl_add_u32 v55, v57, 4, v55
v_bfe_u32 v56, v{LANE}, 1, 3
v_lshlrev_b32 v56, 6, v56
v_sub_u32 v55, v55, v56
v_add_u32 v{CVB}, s83, v55
v_add_u32 v{PW}, s{SRC}, v{L16}
v_lshrrev_b32 v{PR}, 6, v0
v_lshlrev_b32 v{PR}, 10, v{PR}
v_lshl_add_u32 v{PR}, v54, 8, v{PR}
v_bfe_u32 v55, v0, 3, 3
v_lshl_add_u32 v{PR}, v55, 5, v{PR}
v_bfe_u32 v55, v0, 2, 1
v_lshl_add_u32 v{PR}, v55, 13, v{PR}
v_add_u32 v{PR}, {CP}, v{PR}
v_lshrrev_b32 v56, 3, v0
v_lshlrev_b32 v56, 6, v56
v_lshl_add_u32 v56, v54, 4, v56
v_lshl_add_u32 v{XR}, v55, 12, v56
v_add_u32 v{XR}, {XC}, v{XR}
v_mul_u32_u24 v{UR}, {UCH}, v55
v_sub_u32 v{UR}, v{UR}, v56
v_add_u32 v{UR}, {UC + UCS + 16 + 2*2040 - 2048}, v{UR}
v_lshrrev_b32 v56, 5, v0
v_mul_u32_u24 v56, {UCS}, v56
v_and_b32 v57, 31, v0
v_lshl_add_u32 v56, v57, 4, v56
v_add_u32 v56, {UC+16+4080}, v56
v_lshrrev_b32 v58, 2, v57
v_mul_u32_u24 v58, {KCS}, v58
v_min_u32 v59, 2, v54
v_lshl_add_u32 v58, v59, 4, v58
v_add_u32 v58, {KC}, v58
v_cmp_gt_u32 vcc, 128, v0
v_mov_b32 v60, 0
v_mov_b32 v61, 0
v_cndmask_b32 v56, v58, v56, vcc
v_mov_b32 v62, 0
v_mov_b32 v63, 0
ds_write_b128 v56, v[60:63]
s_mul_i32 s78, s{WV}, {SCW}
s_add_u32 s78, s78, {SCR}
v_add_u32 v46, s78, v{L16}
v_lshrrev_b32 v47, 2, v{LANE}
v_lshlrev_b32 v47, 4, v47
v_bfe_u32 v48, v{LANE}, 1, 1
v_mul_u32_u24 v48, {SCH}, v48
v_add3_u32 v47, v47, v48, s78
v_and_b32 v48, 1, v{LANE}
v_lshl_add_u32 v47, v48, 3, v47
s_lshl_b32 s78, s{WV}, 11
s_add_u32 s78, s78, {EX}
v_add_u32 v48, s78, v{L16}
s_xor_b32 s78, s{WV}, 1
s_lshl_b32 s78, s78, 11
s_add_u32 s78, s78, {EX}
v_add_u32 v49, s78, v{L16}
s_add_u32 s78, s81, {3*KCS + 48}
v_and_b32 v57, 15, v{LANE}
v_lshl_add_u32 v57, v57, 4, s78
v_lshrrev_b32 v130, 5, v{LANE}
v_lshl_add_u32 v130, v130, 9, v57
v_bfe_u32 v58, v{LANE}, 4, 1
v_lshl_add_u32 v130, v58, 3, v130
v_lshrrev_b32 v131, 4, v{LANE}
v_lshl_add_u32 v131, v131, 9, v57
v_lshrrev_b32 v132, 7, v0
v_mul_u32_u24 v132, {KCH}, v132
v_and_b32 v57, 127, v0
v_lshl_add_u32 v132, v57, 5, v132
v_add_u32 v132, {KC+40}, v132
s_lshl_b32 s78, s{WV}, 4
s_add_u32 s78, s78, {STG}
v_mov_b32 v133, s78
v_add_u32 v134, {STG}, v{L16}
s_waitcnt lgkmcnt(0)
s_add_u32 s{TAG}, s{TAG}, 1
s_lshl_b32 s84, s{RBK}, 6
s_lshl_b32 s78, s71, 16
s_and_b32 s79, s71, s{MASK}
v_mov_b32 v{DSK}, s78
v_mov_b32 v{DSK+1}, s79
v_cmp_eq_u32 vcc, 1, v55
s_lshl_b32 s78, s70, 16
s_and_b32 s79, s70, s{MASK}
v_cndmask_b32 v{DSK}, v{DSK}, v{DSK+1}, vcc
s_cmp_lt_u32 s{WV}, 2
s_cselect_b32 s78, s78, s79
v_mov_b32 v136, 0x3fb8aa3b
v_mul_f32 v136, s78, v136
v_exp_f32 v136, v136
""")
for j in range(4):
    k(f"v_mov_b32 v{72+4*j+2}, s{TAG}")
    k(f"v_mov_b32 v{72+4*j+3}, s{TAG+1}")
k(f"""
v_mov_b32 v67, s{TAG}
v_cvt_pk_bf16_f32 v136, v136, v136
v_lshlrev_b32 v136, 16, v136             ; dt
""")
k.stamp("setup0")
if W0 >= 1: steps("I"); k.drain_fill()
k.stamp("setup")
k.vmwait("xt")
k.stamp("xload")
for j in range(4):
    G = 72 + 4*j
    k(f"v_perm_b32 v{G}, v{28+j}, v{24+j}, v53")
    k(f"v_perm_b32 v{G+1}, v{36+j}, v{32+j}, v53")
    k(f"s_add_u32 s78, s84, {XT + j*16384}")
    k.vm(f"buffer_store_dwordx4 {vr(G,4)}, v51, {srd(SWS)}, s78 offen sc1", "xtst")
k.stamp("xst")
k.vmwait("xs")
S, Qq = 56, 58
for r in range(2):
    k(f"v_dot2_f32_bf16 v{S+r}, v{16+4*r}, s{ONES}, 0")
    k(f"v_dot2_f32_bf16 v{Qq+r}, v{16+4*r}, v{16+4*r}, 0")
for i in range(1, 4):
    for r in range(2):
        k(f"v_dot2_f32_bf16 v{S+r}, v{16+4*r+i}, s{ONES}, v{S+r}")
        k(f"v_dot2_f32_bf16 v{Qq+r}, v{16+4*r+i}, v{16+4*r+i}, v{Qq+r}")
k("s_nop 2")
for ctl in ["row_shr:1 row_mask:0xf bank_mask:0xf bound_ctrl:0", "row_shr:2 row_mask:0xf bank_mask:0xf bound_ctrl:0",
            "row_shr:4 row_mask:0xf bank_mask:0xf bound_ctrl:0", "row_shr:8 row_mask:0xf bank_mask:0xf bound_ctrl:0",
            "row_bcast:15 row_mask:0xa bank_mask:0xf", "row_bcast:31 row_mask:0xc bank_mask:0xf"]:
    for r in range(4):
        k(f"v_add_f32_dpp v{S+r}, v{S+r}, v{S+r} {ctl}")
stats_finish(S, Qq, 60, 66, 64)
k(f"""
s_mov_b32 exec_lo, 0
s_mov_b32 exec_hi, 0x80000000
""")
k.ds("ds_write_b128 v133, v[64:67]")
k("s_mov_b64 exec, -1")
k.stamp("stat")
k.dswait()
k("s_barrier")
k(f"""
s_cmp_lg_u32 s{WV}, 0
s_cbranch_scc1 Lnopub
s_mov_b64 exec, 0xf
ds_read_b128 v[64:67], v134
s_add_u32 s78, s84, {ST}
s_waitcnt lgkmcnt(0)
buffer_store_dwordx4 v[64:67], v{L16}, {srd(SWS)}, s78 offen sc1
s_mov_b64 exec, -1
""")
k.label("Lnopub")
k.stamp("pub")
def clr1():
    th = []
    for hf in range(2):
        for tb in range(2):
            for i in range(2):
                def f(hf=hf, tb=tb, i=i):
                    k.vm(f"buffer_store_dwordx4 v[68:71], v{L16}, {srd(SH1)}, s{92+2*hf+tb} offen offset:{1024*i} sc1", "clr1")
                th.append(f)
    return th
k(f"""
s_mov_b32 s92, s{H1B}
s_mov_b32 s93, s{HB1}
s_add_u32 s94, s{H1B}, {32*114688}
s_add_u32 s95, s{HB1}, {32*114688}
s_lshl_b32 s78, s2, 6
s_lshl_b32 s79, s{WV}, 2
s_add_u32 s78, s78, s79
s_add_u32 s78, s78, {CF}
v_mov_b32 v138, s78
v_mov_b32 v139, s{TAG}
""")
k.vmwait("par")
def cf_pub():
    k.vmwait("clrh")
    k.vm(f"buffer_store_dword v139, v138, {srd(SWS)}, 0 offen sc1", "cf")
KS = [x.split("=")[1] for x in sys.argv if x.startswith("ks=")]
KS = KS[0] if KS else "IfxCICxI0C1"
def steps2(st):
    c1 = clr1()
    for ch in st:
        if ch == "f": k.fillq.append(cf_pub)
        elif ch == "x": k.fillq += c1[:4]; c1 = c1[4:]
        elif ch == "h": k.fillq.append(clrh)
        elif ch == "_": k.fillq += [lambda: None]*8
        else: steps(ch)
steps2(KS)
PK = [56, 60, 100, 104]
with k.fill(opt("fk", 4)):
    for i in range(6):
        k(f"v_lshlrev_b32 v{40+i}, 16, v{40+i}")
    k(f"""
    s_mov_b32 s78, 0x3fb8aa3b
    s_mov_b32 s79, 0x3e22f983
    v_pk_mul_f32 v[40:41], v[40:41], v[136:137] op_sel_hi:[1,0]
    v_pk_mul_f32 v[42:43], v[42:43], v[136:137] op_sel_hi:[1,0]
    v_pk_mul_f32 v[40:41], v[40:41], s[78:79]
    """)
    WC = 64
    cmul(WC, 44, 42, negim=True)
    E = {}
    free = list(range(72, 100, 2))
    def newE(l):
        E[l] = free.pop(0); return E[l]
    def relE(*ls):
        for l in ls: free.append(E.pop(l))
    for l in (8, 128, 1): newE(l)
    k(f"v_mul_f32 v16, {f2h(8)}, v40\nv_mul_f32 v17, {f2h(8)}, v41\nv_mul_f32 v18, {f2h(128)}, v40\nv_mul_f32 v19, {f2h(128)}, v41")
    k(f"v_fract_f32 v17, v17\nv_fract_f32 v19, v19\nv_fract_f32 v41, v41")
    for l, a_ in ((8,16),(128,18),(1,40)):
        k(f"v_cos_f32 v{E[l]}, v{a_+1}\nv_sin_f32 v{E[l]+1}, v{a_+1}\nv_exp_f32 v{a_}, v{a_}")
    k("s_nop 0")
    for l, a_ in ((8,16),(128,18),(1,40)):
        k(f"v_pk_mul_f32 {vr(E[l],2)}, {vr(E[l],2)}, {vr(a_,2)} op_sel_hi:[1,0]")
    FR = 160
    def tile_reads(t):
        for s in range(4):
            for rd in range(2):
                k.ds(f"ds_read_b64_tr_b16 {ar(FR+16*t+4*s+2*rd,2)}, v47 offset:{512*s+256*rd}", f"kf{t}")
    pks = [0]
    def pack8(vals, hf):
        for ri in range(2):
            P = PK[pks[0] % 4]; pks[0] += 1
            for i in range(4):
                k(f"v_cvt_pk_bf16_f32 v{P+i}, {vals[2*i][ri]}, {vals[2*i+1][ri]}")
            k.ds(f"ds_write_b128 v46, {vr(P,4)} offset:{hf*SCH+1024*ri}")
    cmul(66, WC, E[128], conj=True)
    newE(16); cmul(E[16], E[8], E[8])
    k(f"""
    s_bitcmp1_b32 s{WV}, 0
    s_cselect_b64 vcc, -1, 0
    """)
    k(f"""
    v_cndmask_b32 v16, v{WC}, v66, vcc
    v_cndmask_b32 v17, v{WC+1}, v67, vcc
    v_cndmask_b32 v44, v66, v{WC}, vcc
    v_cndmask_b32 v45, v67, v{WC+1}, vcc
    """)
    GB = 16
    for t in range(2):
        if t == 1:
            k(f"v_mov_b32 v{GB}, v44\nv_mov_b32 v{GB+1}, v45")
        cmul(GB+2, GB, E[8], conj=True)
        for hf in range(2):
            if hf == 1:
                cmulN([(GB, GB+12, E[16]), (GB+2, GB+14, E[16])], conj=True)
            for i in range(1, 4):
                cmulN([(GB+4*i, GB+4*i-4, E[16]), (GB+4*i+2, GB+4*i-2, E[16])], conj=True)
            pack8([(f"v{GB+2*i}", f"v{GB+2*i+1}") for i in range(8)], hf)
        tile_reads(t)
    relE(16)
    free += [16,18,20,22,24,26,28,30,32,34,36,38]
    def mk(*specs):
        lst = []
        for (l, a_, b_) in specs:
            assert a_ + b_ == l
            lst.append((newE(l), E[a_], E[b_]))
        cmulN(lst)
    def ev(l):
        return ("1.0", "0") if l == 0 else (f"v{E[l]}", f"v{E[l]+1}")
    mk((2,1,1),(256,128,128)); mk((3,2,1),(4,2,2),(512,256,256)); mk((5,4,1),(6,4,2),(7,4,3))
    pack8([ev(l) for l in range(8)], 0)
    relE(1,3,5,7,128)
    mk((258,256,2),(260,256,4),(262,256,6),(264,256,8))
    pack8([ev(l) for l in (256,256,258,260,260,260,262,264)], 1)
    tile_reads(2)
    relE(2,6,258,260,262,264)
    mk((516,512,4),(520,512,8),(1024,512,512),(768,512,256)); mk((1032,1024,8),(1280,1024,256),(1536,1024,512),(1792,1024,768)); mk((1288,1280,8),(772,768,4),(776,768,8))
    pack8([ev(l) for l in (512,516,1024,1032,516,520,1280,1288)], 0)
    mk((1544,1536,8),(1800,1792,8))
    pack8([ev(l) for l in (768,772,1536,1544,772,776,1792,1800)], 1)
    tile_reads(3)
k.stamp("kchain")
def poll_issue(P, its, tag):
    for n, it in enumerate(its):
        k(f"s_lshl_b32 s78, s2, 14")
        k(f"s_add_u32 s78, s78, {XT + it*4096}")
        k(f"s_mov_b32 s79, {ST + it*4096}")
        k.vm(f"buffer_load_dwordx4 {vr(P+8*n,4)}, v{T16}, {srd(SWS)}, s78 offen sc1", tag)
        k.vm(f"buffer_load_dwordx4 {vr(P+8*n+4,4)}, v{T16}, {srd(SWS)}, s79 offen sc1", tag)
    if tag == "B":
        k(f"s_mov_b32 s79, {CF}")
        k(f"v_lshlrev_b32 v102, 6, v0")
        k.vm(f"buffer_load_dwordx4 v[104:107], v102, {srd(SWS)}, s79 offen sc1", tag)
def poll_check(P, its, tag):
    L = f"Lp{tag}"
    k("s_mov_b32 s97, 0")
    k.vmwait(tag)
    k.label(L)
    for n in range(2):
        k(f"v_cmpx_eq_u64 vcc, s[{TAG}:{TAG+1}], {vr(P+8*n+2,2)}")
        k(f"v_cmpx_eq_u32 vcc, s{TAG}, v{P+8*n+7}")
    if tag == "B":
        for n in range(4): k(f"v_cmpx_eq_u32 vcc, s{TAG}, v{104+n}")
    k(f"""
    s_cmp_eq_u64 exec, -1
    s_mov_b64 exec, -1
    s_cbranch_scc1 {L}_ok
    s_add_u32 s97, s97, 1
    s_cmp_ge_u32 s97, {SPIN}
    s_cbranch_scc1 {L}_ok
    """)
    sv = list(k.vq)
    poll_issue(P, its, tag)
    k("s_waitcnt vmcnt(0)")
    k.vq = sv
    k(f"s_branch {L}")
    k.label(f"{L}_ok")
    k("s_nop 3")
    k.note(97, 56 if tag == "A" else 57)
def ln_apply(P, its, T):
    for n, it in enumerate(its):
        X = P + 8*n; Gr = X + 4
        k.ds(f"ds_write_b64 v{VXC}, {vr(X,2)} offset:{1024*it}")
        O = T + 10 + 2*n
        qp = ["[0,2,0,2]", "[1,3,1,3]"]
        for d in range(2):
            k(f"v_mov_b32_dpp v{T+8+d}, v{Gr+2} quad_perm:{qp[d]} row_mask:0xf bank_mask:0xf")
        for d in range(2):
            unpack(T+4*d, X+d)
            unpack(T+4*d+2, T+8+d)
            k(f"v_pk_add_f32 {vr(T+4*d,2)}, {vr(T+4*d,2)}, {vr(T+4*d+2,2)} neg_lo:[0,1] neg_hi:[0,1]")
            k(f"v_cvt_pk_bf16_f32 v{T+4*d+2}, v{T+4*d}, v{T+4*d+1}")
        for d in range(2):
            unpack(T+4*d, T+4*d+2)
        for d in range(2):
            k(f"v_mul_f32_dpp v{T+4*d+1}, v{Gr+1}, v{T+4*d+1} quad_perm:{qp[d]} row_mask:0xf bank_mask:0xf")
            k(f"v_mul_f32_dpp v{T+4*d}, v{Gr}, v{T+4*d} quad_perm:{qp[d]} row_mask:0xf bank_mask:0xf")
        for d in range(2):
            k(f"v_cvt_pk_bf16_f32 v{O+1-d}, v{T+4*d+1}, v{T+4*d}")
        k.ds(f"ds_write_b64 v{VU}, {vr(O,2)} offset:{1024*(3-it)}")
        k.ds(f"ds_write_b64 v{VU}, {vr(O,2)} offset:{1024*(3-it) + UCS + 8}")
k.drain_fill()
PA, PB_ = 72, 32
poll_issue(PA, (0,1), "A")
k.dswait("kf3")
for s in range(4):
    for (acc, ta, tb_) in ((24,2,1),(28,3,1),(16,2,0),(20,3,0)):
        c = "0" if s == 0 else vr(acc,4)
        k(f"v_mfma_f32_16x16x32_bf16 {vr(acc,4)}, {ar(FR+16*ta+4*s,4)}, {ar(FR+16*tb_+4*s,4)}, {c}")
k("""
s_mov_b32 s92, 0xffff0000
s_mov_b32 s93, 0xffff0000
s_mov_b32 s94, 0xaaaaaaaa
s_mov_b32 s95, 0xaaaaaaaa
s_nop 1
""")
k.ds("ds_write_b128 v48, v[24:27]")
k.ds("ds_write_b128 v48, v[28:31] offset:1024")
k.dswait()
k("s_barrier")
k.stamp("kbar1")
k.ds("ds_read_b128 v[24:27], v49", "ex")
k.ds("ds_read_b128 v[28:31], v49 offset:1024", "ex")
steps("I"); k.drain_fill()
k.dswait("ex")
k(f"""
v_pk_add_f32 v[16:17], v[16:17], v[24:25]
v_pk_add_f32 v[18:19], v[18:19], v[26:27]
v_pk_add_f32 v[20:21], v[20:21], v[28:29]
v_pk_add_f32 v[22:23], v[22:23], v[30:31]
v_cvt_pk_bf16_f32 v24, v16, v17
v_cvt_pk_bf16_f32 v25, v18, v19
v_cndmask_b32 v16, v20, v21, s[92:93]
v_cndmask_b32 v17, v22, v23, s[94:95]
v_cvt_pk_bf16_f32 v26, v20, v20
v_cvt_pk_bf16_f32 v27, v16, v21
v_cvt_pk_bf16_f32 v28, v22, v22
v_cvt_pk_bf16_f32 v29, v22, v22
v_cvt_pk_bf16_f32 v30, v17, v23
v_cvt_pk_bf16_f32 v31, v23, v23
""")
k.ds("ds_write_b64 v130, v[24:25]")
k.ds("ds_write_b64 v130, v[26:27] offset:1024")
k.ds("ds_write_b128 v131, v[28:31] offset:2048")
k.dswait()
k("s_barrier")
k.stamp("kbar2")
D = 14
k.ds(f"ds_read_b64 v[16:17], v132 offset:{3*KCS}", "s2")
k.ds(f"ds_read_b128 v[18:21], v132 offset:{3*KCS+8}", "s2")
k.ds(f"ds_read_b128 v[22:25], v132 offset:{3*KCS+24}", "s2")
steps("C"); k.drain_fill()
k.dswait("s2")
for i in range(8):
    k(f"v_alignbit_b32 v{28+i}, v{D+4+i}, v{D+3+i}, 16")
k.ds(f"ds_write_b128 v132, v[28:31] offset:{2*KCS+8}")
k.ds(f"ds_write_b128 v132, v[32:35] offset:{2*KCS+24}")
for i in range(8):
    k(f"v_alignbit_b32 v{44+i}, v{D+3+i}, v{D+2+i}, 16")
k.ds(f"ds_write_b128 v132, v[44:47] offset:{8}")
k.ds(f"ds_write_b128 v132, v[48:51] offset:{24}")
for i in range(4):
    k(f"v_pk_mov_b32 {vr(60+2*i,2)}, {vr(D+2+2*i,2)}, {vr(D+4+2*i,2)} op_sel:[1,0]")
k.ds(f"ds_write_b128 v132, v[60:63] offset:{KCS+8}")
k.ds(f"ds_write_b128 v132, v[64:67] offset:{KCS+24}")
k.stamp("kdone")
poll_check(PA, (0,1), "A")
k.stamp("syncA")
poll_issue(PB_, (2,3), "B")
steps("CI2CI")
with k.fill(2):
    ln_apply(PA, (0,1), 88)
k.drain_fill()
k.dswait()
k("s_barrier")
k.stamp("ubarA")
ACC = 80
def cfr(buf, kind, idx):
    o = (0 if kind == "A" else 32) + 4*idx
    return vr(16+o, 4) if buf == 0 else ar(160+o, 4)
def conv_reads(rp, nfr):
    buf = rp & 1
    out = []
    for i in range(nfr):
        out.append((f"ds_read_b128 {cfr(buf,'A',i)}, v{CVA} offset:{512*i + 64*rp}", f"cA{rp}_{i}"))
        out.append((f"ds_read_b128 {cfr(buf,'B',i)}, v{CVB} offset:{512*(7-i) + 64*rp}", f"cB{rp}_{i}"))
    return out
def conv_half(hf, hooks={}):
    nfr = 4 if hf == 0 else 8
    pairs = [(a_, c_) for a_ in range(nfr) for c_ in range(nfr) if 4*hf <= a_ + c_ <= 4*hf + 3]
    pairs.sort(key=lambda p: (max(p), p[0]+p[1]))
    for ins, tg in conv_reads(0, nfr): k.ds(ins, tg)
    first = set()
    for rp in range(4):
        if rp in hooks: hooks[rp]()
        nxt_ = conv_reads(rp+1, nfr) if rp < 3 else []
        for (a_, c_) in pairs:
            m = max(a_, c_)
            k.dswait(f"cB{rp}_{m}")
            n = a_ + c_ - 4*hf
            cc = vr(ACC+4*n,4) if n in first else "0"
            first.add(n)
            k(f"v_mfma_f32_16x16x32_bf16 {vr(ACC+4*n,4)}, {cfr(rp&1,'A',c_)}, {cfr(rp&1,'B',a_)}, {cc}")
            if nxt_:
                ins, tg = nxt_.pop(0); k.ds(ins, tg)
            k.drain_fill(1)
        for ins, tg in nxt_: k.ds(ins, tg)
def conv_epi1(hf):
    k("s_nop 7")
    for n in range(4):
        k.ds(f"ds_write_b128 v{PW}, {vr(ACC+4*n,4)} offset:{hf*CPH + 1024*n}")
    k.ds(f"ds_read_b128 v[64:67], v{UR} offset:{(1-hf)*2048}")
    k.ds(f"ds_read_b128 v[68:71], v{XR} offset:{hf*2048}")
def conv_epi2(hf):
    k.ds(f"ds_read_b128 v[48:51], v{PR} offset:{hf*CPH}", "pp")
    k.ds(f"ds_read_b128 v[52:55], v{PR} offset:{hf*CPH+16}", "pp")
    k.ds(f"ds_read_b128 v[56:59], v{PR} offset:{hf*CPH+4096}", "pp")
    k.ds(f"ds_read_b128 v[60:63], v{PR} offset:{hf*CPH+4096+16}", "pp")
    for i in range(4):
        unpack(72, 67-i)
        k(f"v_pk_mul_f32 v[72:73], v[72:73], {vr(DSK,2)} op_sel_hi:[1,0]")
        k(f"v_cvt_pk_bf16_f32 v{67-i}, v73, v72")
    k.dswait("pp")
    for i in range(4):
        k(f"v_pk_add_f32 {vr(48+2*i,2)}, {vr(48+2*i,2)}, {vr(56+2*i,2)}")
        k(f"v_cvt_pk_bf16_f32 v74, v{48+2*i}, v{49+2*i}")
        unpack(72, 74)
        unpack(74, 67-i)
        k(f"v_pk_add_f32 v[72:73], v[72:73], v[74:75]")
        k(f"v_cvt_pk_bf16_f32 v74, v72, v73")
        unpack(72, 74)
        unpack(74, 68+i)
        k(f"v_pk_add_f32 v[72:73], v[72:73], v[74:75]")
        k(f"v_cvt_pk_bf16_f32 v{76+i}, v72, v73")
    k.vm(f"buffer_store_dwordx4 v[76:79], v{VHT}, {srd(SWS)}, s{HST+hf} offen sc1", f"hst{hf}")
def h_setup():
    k(f"s_lshr_b32 s79, s{WV}, 1")
    k(f"s_xor_b32 s81, s{RG2}, s79")
    k(f"s_lshl_b32 s81, s81, 15")
    k(f"s_add_u32 s81, s81, {HT}")
    k(f"s_and_b32 s83, s{WV}, 1")
    k(f"s_add_u32 s83, s83, s{ROT1}")
    for c in range(4):
        k(f"s_add_u32 s78, s83, {2*c}")
        k(f"s_and_b32 s78, s78, 7")
        k(f"s_lshl_b32 s78, s78, 12")
        k(f"s_add_u32 s{92+c}, s78, s81")
def h_thunks(hf):
    th = []
    for c in range(4):
        def first(c=c):
            if hf == 0:
                if c in slot_last: k.dswait(slot_last[c])
                k(f"s_mov_b32 m0, s{RING+c}")
                k(f"s_mov_b32 s101, s{92+c}")
            else:
                k(f"s_or_b32 m0, s{RING+c}, {RB}")
                k(f"s_add_u32 s101, s{92+c}, 0x100000")
        th.append(first)
        for i in range(4):
            th.append(lambda c=c, i=i: k.vm(f"buffer_load_dwordx4 v{L16}, {srd(SWS)}, s101 offen offset:{1024*i} sc1 lds", f"h{hf}_{c}"))
    return th
steps("CICI")
conv_half(0)
k.stamp("conv0")
conv_epi1(0)
k.drain_fill()
poll_check(PB_, (2,3), "B")
k.stamp("syncB")
steps("CI3")
with k.fill(3):
    ln_apply(PB_, (2,3), 88)
k.drain_fill()
k.vmwait("clr1")
k.dswait()
k("s_barrier")
k(f"""
s_or_b32 s78, s2, s{WV}
s_cmp_lg_u32 s78, 0
s_cbranch_scc1 Lnoep
v_mov_b32 v28, s{TAG}
v_mov_b32 v29, {EP}
s_mov_b64 exec, 1
buffer_store_dword v28, v29, {srd(SWS)}, 0 offen
s_mov_b64 exec, -1
""")
k.label("Lnoep")
steps("CI4")
with k.fill(3):
    conv_epi2(0)
k.drain_fill()
k.stamp("cepi0")
h_setup()
steps("CICICICICC")
assert qi[0] == len(Q) and qc[0] == len(Q), (qi, qc)
def hk3():
    k.drain_fill()
    k.fillq += h_thunks(0)
conv_half(1, {3: hk3})
k.stamp("conv1")
conv_epi1(1)
k.drain_fill()
k.dswait()
k("s_barrier")
steps("567")
with k.fill(4):
    conv_epi2(1)
k.drain_fill()
k.stamp("cepi1")
G1A, BF, SA, SEL, HV, HCK, SV = 16, 48, 72, 80, 84, 85, 14
stubs = []
def g2reg(pos):
    return vr(108+4*pos, 4) if pos < 8 else w1reg(pos-8)
def g2r0(pos):
    return 108+4*pos if pos < 8 else 160+4*(pos-8)
def h1_table():
    k(f"s_mul_i32 s84, s{RG2}, 114688")
    k(f"s_mul_i32 s78, s{WV}, {28*1024}")
    k(f"s_add_u32 s84, s84, s78")
    k(f"s_add_u32 s84, s84, {H1F}")
    for g4 in range(7):
        k(f"s_add_u32 s78, s{ROT2}, {g4}")
        k(f"s_cmp_ge_u32 s78, 7")
        k(f"s_cselect_b32 s79, 7, 0")
        k(f"s_sub_u32 s78, s78, s79")
        k(f"s_lshl_b32 s78, s78, 12")
        k(f"s_add_u32 s{16+g4}, s78, s84")
        k(f"s_add_u32 s{23+g4}, s{16+g4}, {32*114688}")
def f_ins(b, i):
    return f"buffer_load_dwordx4 {g2reg(4*(b%7)+i)}, v{L16}, {srd(SWS)}, s{16+b} offen offset:{1024*i} sc1"
def f_block(b):
    return [lambda i=i: k.vm(f_ins(b, i), f"f{b}") for i in range(4)]
def hchk_read(hf, c):
    k.vmwait(f"h{hf}_{c}")
    k.ds(f"ds_read_b32 v{HV}, v{HCK} offset:{c*4096}", "hv")
def hchk_test(hf, c):
    L = f"Lhs_{hf}_{c}"
    k.dswait("hv")
    k(f"v_cmp_eq_u32 vcc, -1, v{HV}")
    k(f"s_cbranch_vccnz {L}")
    k.label(f"{L}_ret")
    def stub():
        k.label(L)
        k(f"s_mov_b32 s83, m0")
        k(f"s_mov_b32 s81, s101")
        k.label(f"{L}_l")
        k(f"s_add_u32 s91, s91, 1")
        k(f"s_cmp_ge_u32 s91, {SPIN}")
        k(f"s_cbranch_scc1 {L}_x")
        for t in h_thunks(hf)[5*c:5*c+5]: t()
        k("s_waitcnt vmcnt(0)")
        k(f"ds_read_b32 v{HV}, v{HCK} offset:{c*4096}")
        k("s_waitcnt lgkmcnt(0)")
        k(f"v_cmp_eq_u32 vcc, -1, v{HV}")
        k(f"s_cbranch_vccnz {L}_l")
        k.label(f"{L}_x")
        k(f"s_mov_b32 m0, s83")
        k(f"s_mov_b32 s101, s81")
        k(f"s_branch {L}_ret")
    stubs.append(stub)
def g1(hf, hooks):
    L = f"Lg1_{hf}"
    k(f"s_mov_b32 s97, 0")
    k.label(L)
    def rd_ins(n, tb):
        c, i = n // 8, n % 8
        for rd in range(2):
            k.ds(f"ds_read_b64_tr_b16 {vr(BF+8*(n%3)+4*tb+2*rd,2)}, v{AX+(i>>1)} offset:{tb*32768 + c*4096 + (i&1)*1024 + rd*512}", f"b{n}")
    hchk_read(hf, 0); hchk_test(hf, 0)
    k("s_barrier")
    k.stamp(f"g1w{hf}")
    for n in range(2):
        for tb in range(2): rd_ins(n, tb)
    for n in range(32):
        if n in hooks: hooks[n]()
        k.dswait(f"b{n}")
        for tb in range(2):
            cc = "0" if n == 0 else vr(G1A+16*tb,16)
            k(f"v_mfma_f32_32x32x16_bf16 {vr(G1A+16*tb,16)}, {w1reg(n)}, {vr(BF+8*(n%3)+4*tb,4)}, {cc}")
            if tb == 0 and n % 8 == 6 and n < 24: k("s_barrier")
            if n + 2 < 32: rd_ins(n+2, tb)
            if n % 8 < 2:
                cc = "0" if n == 0 else vr(SA+4*tb,4)
                k(f"v_mfma_f32_16x16x32_bf16 {vr(SA+4*tb,4)}, {vr(SEL,4)}, {vr(BF+8*(n%3)+4*tb,4)}, {cc}")
            if tb == 1 and n % 8 == 3 and n < 24: hchk_read(hf, n//8+1)
            elif tb == 1 and n % 8 == 5 and n < 24: hchk_test(hf, n//8+1)
            elif n == 27 and tb == 0:
                k(f"v_cndmask_b32 v86, v{SA}, v{SA+1}, s[70:71]")
                k(f"v_cndmask_b32 v87, v{SA+4}, v{SA+5}, s[70:71]")
                k.ds(f"ds_write_b64 v88, v[86:87] offset:{hf*2048}", "sx")
            elif n == 28 and tb == 0:
                k.dswait("sx")
                k("s_barrier")
                for j in range(4):
                    k.ds(f"ds_read_b64 {vr(90+2*j,2)}, v89 offset:{hf*2048 + 512*j}", "sr")
            elif n == 30 and tb == 0:
                k.dswait("sr")
                k("v_add_f32 v90, v90, v92\nv_add_f32 v94, v94, v96\nv_add_f32 v91, v91, v93")
            elif n == 30 and tb == 1:
                k(f"v_add_f32 v95, v95, v97\nv_add_f32 v{SV+hf}, v90, v94\nv_add_f32 v91, v91, v95")
            elif n == 31 and tb == 0:
                k(f"v_cmp_u_f32 vcc, v{SV+hf}, v91")
                k(f"v_mul_f32 v90, 0x3b000000, v{SV+hf}\nv_mul_f32 v91, 0x3b000000, v91")
                k("v_cvt_pk_bf16_f32 v92, v90, v91")
            elif n == 31 and tb == 1:
                unpack(90, 92)
            else:
                k.drain_fill(2)
    k.drain_fill()
    k(f"s_cbranch_vccz {L}_ok")
    k(f"s_add_u32 s97, s97, 1")
    k(f"s_cmp_ge_u32 s97, {SPIN//10}")
    k(f"s_cbranch_scc1 {L}_ok")
    k("s_waitcnt lgkmcnt(0)")
    k("s_barrier")
    sv = list(k.vq); sd = list(k.dq)
    for t in h_thunks(hf): t()
    k("s_waitcnt vmcnt(0)")
    k.vq = sv; k.dq = sd
    k(f"s_branch {L}")
    k.label(f"{L}_ok")
    k.note(97, 58+hf)
def g1_epi(hf):
    k("s_nop 7")
    for tb in range(2):
        sb = H1B if tb == 0 else HB1
        if hf:
            k(f"s_add_u32 s78, s{sb}, {32*114688}"); sb = 78
        for fr in range(2):
            O = 92 + 4*fr + 8*tb
            for d in range(4):
                r = G1A + 16*tb + 8*fr + 2*d
                k(f"v_pk_fma_f32 {vr(r,2)}, v[90:91], {vr(CS+8*fr+2*d,2)}, {vr(r,2)} op_sel:[{tb},0,0] op_sel_hi:[{tb},1,1] neg_lo:[1,0,0] neg_hi:[1,0,0]")
                k(f"v_cvt_pk_bf16_f32 v{O+d}, v{r}, v{r+1}")
                k(f"v_pk_max_i16 v{O+d}, v{O+d}, 0")
            k.vm(f"buffer_store_dwordx4 {vr(O,4)}, v{L16}, {srd(SH1)}, s{sb} offen offset:{1024*fr} sc1", f"h1st{hf}")
def add(th):
    def f(): k.fillq += th()
    return f
H1AT = opt("h1at", 14)
k(f"""
v_mov_b32 v140, v{RDC}
s_mov_b32 s91, 0
s_mov_b32 s70, 0xffff0000
s_mov_b32 s71, 0xffff0000
v_lshrrev_b32 v{SEL}, 4, v{LANE}
v_xor_b32 v{SEL}, v{SEL}, v{LANE}
v_and_b32 v{SEL}, 1, v{SEL}
v_add_u32 v{SEL}, -1, v{SEL}
v_and_b32 v{SEL}, s{ONES}, v{SEL}
v_mov_b32 v{SEL+1}, v{SEL}
v_mov_b32 v{SEL+2}, v{SEL}
v_mov_b32 v{SEL+3}, v{SEL}
v_bfe_u32 v{HCK}, v{LANE}, 1, 4
v_lshlrev_b32 v{HCK}, 2, v{HCK}
v_lshl_add_u32 v{HCK}, v{LANE}, 6, v{HCK}
v_add_u32 v{HCK}, s{RING}, v{HCK}
v_lshlrev_b32 v89, 3, v{LANE}
v_add_u32 v89, {G1X}, v89
s_lshl_b32 s78, s{WV}, 9
v_add_u32 v88, s78, v89
s_lshl_b32 s{SRU}, s{WV}, 13
s_add_u32 s{SRU}, s{SRU}, {RA+32768}
v_add_u32 v{RDU}, s{SRU}, v{LP}
""")
RDC = 140
g1(0, {2: add(lambda: w_issue(2, 8, 'C')), 9: add(lambda: w_consume(2, 8, 'C') + w_issue(2, 9, 'C')), H1AT: add(lambda: h_thunks(1)), 24: add(lambda: w_consume(2, 9, 'C'))})
k.stamp("g1_0")
g1_epi(0)
for i in range(4):
    k(f"v_add_u32 v{AX+i}, {RB}, v{AX+i}")
k(f"v_add_u32 v{HCK}, {RB}, v{HCK}")
h1_table()
k.stamp("g1e0")
FAT = opt("fat", 20)
g1(1, {1: add(lambda: w_issue(2,10,'U0') + w_issue(2,11,'U1') + w_issue(2,12,'C')),
       9: add(lambda: w_consume(2,10,'U0') + w_issue(2,13,'U0') + w_consume(2,11,'U1')), 16: add(lambda: w_consume(2,12,'C')),
       FAT: add(lambda: f_block(0) + f_block(1) + w_consume(2,13,'U0'))})
k.stamp("g1_1")
k.fillq += f_block(2)
with k.fill(10):
    g1_epi(1)
k.drain_fill()
k.note(91, 61)
k.stamp("g1e1")
G2A = 16
k(f"""
s_lshl_b32 s78, s{WV}, 13
v_add_u32 v48, s78, v{LP}
v_add_u32 v49, {RB}, v48
""")
for hf in range(2):
    for u in range(8):
        for rd in range(2):
            k.ds(f"ds_read_b64_tr_b16 {vr(16+4*u+2*rd if hf == 0 else 52+4*u+2*rd,2)}, v{48+hf} offset:{u*1024+rd*512}", f"q{hf}")
k(f"""
v_and_b32 v84, 31, v{LANE}
v_lshlrev_b32 v85, 5, v84
v_lshrrev_b32 v86, 5, v{LANE}
v_lshl_add_u32 v85, v86, 2, v85
s_lshl_b32 s79, s{WV}, 3
s_add_u32 s79, s79, {QX}
v_add_u32 v85, s79, v85                  ; QX + t*32 + (2w+g)*4
v_lshlrev_b32 v84, 2, v84
v_add_u32 v84, {SXX}, v84                ; SX + t*4
v_add_u32 v4, s78, v{L16}
""")
for hf in range(2):
    k.dswait(f"q{hf}")
    B = 16 if hf == 0 else 52
    for u in range(32):
        c = "0" if u < 2 else f"v{88+2*hf+(u&1)}"
        k(f"v_dot2_f32_bf16 v{88+2*hf+(u&1)}, v{B+u}, v{B+u}, {c}")
k(f"""
s_and_b32 s78, s{WV}, 1
s_lshr_b32 s79, s{WV}, 1
v_and_b32 v50, 15, v{LANE}
v_add_f32 v88, v88, v89
v_add_f32 v90, v90, v91
""")
k.ds(f"ds_write_b32 v85, v88")
k.ds(f"ds_write_b32 v85, v90 offset:1024")
k.ds(f"ds_write_b32 v84, v{SV}")
k.ds(f"ds_write_b32 v84, v{SV+1} offset:128")
k(f"""
s_lshl_b32 s81, s78, 4
v_add_u32 v50, s81, v50                  ; t
v_lshrrev_b32 v51, 4, v{LANE}
s_lshl_b32 s81, s79, 2
v_add_u32 v51, s81, v51                  ; dq
v_lshlrev_b32 v5, 10, v51
v_lshl_add_u32 v5, v50, 4, v5
v_add_u32 v6, {RB}, v5
v_lshlrev_b32 v7, 10, v50
v_lshl_add_u32 v7, v51, 4, v7
v_lshlrev_b32 v8, 5, v50
v_add_u32 v8, {QX}, v8
v_lshlrev_b32 v9, 2, v50
v_add_u32 v9, {SXX}, v9
s_sub_u32 s81, s{DT}, s{ROT1}
s_and_b32 s83, s81, 1
s_lshl_b32 s83, s83, 14
s_bfe_u32 s81, s81, 0x20001
s_lshl_b32 s81, s81, 12
s_add_u32 s81, s81, s83
s_lshl_b32 s83, s78, 5
s_add_u32 s81, s81, s83
v_and_b32 v10, 0xd8, v{LP}
v_lshl_add_u32 v10, v51, 9, v10
v_add_u32 v10, s81, v10
v_add_u32 v11, {RB}, v10
v_add_u32 v13, {RB}, v4
s_lshl_b32 s98, s{RG2}, 15
s_lshl_b32 s79, s{DT}, 7
s_add_u32 s98, s98, s79
s_add_u32 s99, s98, 0x100000
s_mov_b32 s97, 0
""")
k.dswait()
k("s_barrier")
k.stamp("g2start")
def r_thunks():
    th = []
    def a():
        k.ds("ds_read_b128 v[52:55], v8", "qr"); k.ds("ds_read_b128 v[56:59], v8 offset:16", "qr")
    def b():
        k.ds("ds_read_b128 v[60:63], v8 offset:1024", "qr"); k.ds("ds_read_b128 v[64:67], v8 offset:1040", "qr")
    def c():
        k.ds("ds_read_b32 v68, v9", "qr"); k.ds("ds_read_b32 v69, v9 offset:128", "qr")
    th += [a, b, c, lambda: None, lambda: None, lambda: None, lambda: k.dswait("qr")]
    lines = []
    for hf in range(2):
        B = 52 + 8*hf
        for i in range(4): lines.append(f"v_add_f32 v{B+i}, v{B+i}, v{B+4+i}")
        lines += [f"v_add_f32 v{B}, v{B}, v{B+1}", f"v_add_f32 v{B+2}, v{B+2}, v{B+3}", f"v_add_f32 v{70+hf}, v{B}, v{B+2}"]
    for hf in range(2):
        lines += [f"v_mul_f32 v{68+hf}, 0x3b000000, v{68+hf}", f"v_mul_f32 v{70+hf}, 0x3b000000, v{70+hf}", f"v_fma_f32 v{70+hf}, -v{68+hf}, v{68+hf}, v{70+hf}"]
    lines += ["v_cvt_pk_bf16_f32 v72, v70, v71", "v_pk_max_i16 v72, v72, 0", f"v_and_b32 v71, s{MASK}, v72", "v_lshlrev_b32 v70, 16, v72",
              "v_add_f32 v70, 0x3727c5ac, v70", "v_add_f32 v71, 0x3727c5ac, v71", "v_cvt_pk_bf16_f32 v72, v70, v71", f"v_and_b32 v71, s{MASK}, v72", "v_lshlrev_b32 v70, 16, v72",
              "v_sqrt_f32 v70, v70", "v_sqrt_f32 v71, v71\ns_nop 0", "v_cvt_pk_bf16_f32 v72, v70, v71", f"v_and_b32 v71, s{MASK}, v72", "v_lshlrev_b32 v70, 16, v72",
              "v_rcp_f32 v48, v70", "v_rcp_f32 v49, v71\ns_nop 0"]
    th += [lambda l=l: k(l) for l in lines]
    return th
def fin_thunks(hf, packed):
    th = []
    P = 52
    for w in range(4):
        def rd(w=w):
            for g in range(2):
                k.ds(f"ds_read_b128 {vr(P+8*w+4*g,4)}, v{5+hf} offset:{32768 + w*8192 + g*512}", "fp")
        th.append(rd)
    def rr():
        for rd_ in range(2):
            k.ds(f"ds_read_b64_tr_b16 {vr(84+2*rd_,2)}, v{10+hf} offset:{rd_*256}", "fp")
    th.append(rr)
    if not packed: th += [lambda: None]*4
    th.append(lambda: k.dswait("fp"))
    lines = []
    for i in range(4):
        a_ = P + 2*i
        if packed:
            lines += [f"v_pk_add_f32 {vr(a_,2)}, {vr(a_,2)}, {vr(a_+8,2)}", f"v_pk_add_f32 {vr(a_+16,2)}, {vr(a_+16,2)}, {vr(a_+24,2)}",
                      f"v_pk_add_f32 {vr(a_,2)}, {vr(a_,2)}, {vr(a_+16,2)}", f"v_pk_mul_f32 {vr(a_,2)}, {vr(a_,2)}, v[48:49] op_sel:[0,{hf}] op_sel_hi:[1,{hf}]"]
        else:
            for e in range(2):
                lines += [f"v_add_f32 v{a_+e}, v{a_+e}, v{a_+8+e}", f"v_add_f32 v{a_+16+e}, v{a_+16+e}, v{a_+24+e}",
                          f"v_add_f32 v{a_+e}, v{a_+e}, v{a_+16+e}", f"v_mul_f32 v{a_+e}, v{a_+e}, v{48+hf}"]
        lines += [f"v_cvt_pk_bf16_f32 v88, v{a_}, v{a_+1}", f"v_and_b32 v{a_+1}, s{MASK}, v88", f"v_lshlrev_b32 v{a_}, 16, v88",
                  f"v_and_b32 v{a_+9}, s{MASK}, v{84+i}", f"v_lshlrev_b32 v{a_+8}, 16, v{84+i}"]
        if packed:
            lines += [f"v_pk_add_f32 {vr(a_,2)}, {vr(a_,2)}, {vr(a_+8,2)}"]
        else:
            lines += [f"v_add_f32 v{a_}, v{a_}, v{a_+8}", f"v_add_f32 v{a_+1}, v{a_+1}, v{a_+9}"]
        lines += [f"v_cvt_pk_bf16_f32 v{92+i}, v{a_}, v{a_+1}"]
    th += [lambda l=l: k(l) for l in lines]
    th.append(lambda: k.vm(f"buffer_store_dwordx4 v[92:95], v7, {srd(SOUT)}, s{98+hf} offen", "out"))
    return th
CK = 100
def chk_lines(b):
    r = [g2r0(4*(b%7)+i) for i in range(4)]
    regs = [x+d for x in r for d in range(4)]
    ls = [f"v_or3_b32 v{CK}, v{regs[0]}, v{regs[1]}, v{regs[2]}"]
    for i in range(3, 15, 2):
        ls.append(f"v_or3_b32 v{CK}, v{CK}, v{regs[i]}, v{regs[i+1]}")
    ls.append(f"v_or_b32 v{CK}, v{CK}, v{regs[15]}")
    ls.append(f"v_cmp_gt_i32 vcc, 0, v{CK}")
    return ls
def chk_branch(b, upto):
    L = f"Lfs_{b}"
    k(f"s_cbranch_vccnz {L}")
    k.label(f"{L}_ret")
    def stub():
        k.label(L)
        k(f"s_add_u32 s97, s97, 1")
        k(f"s_cmp_ge_u32 s97, {SPIN}")
        k(f"s_cbranch_scc1 {L}_ret")
        for bb in range(b, upto+1):
            for i in range(4): k(f_ins(bb, i))
        k("s_waitcnt vmcnt(0)")
        for l in chk_lines(b): k(l)
        k(f"s_cbranch_vccnz {L}")
        k(f"s_branch {L}_ret")
    stubs.append(stub)
k.vmwait("f0")
for l in chk_lines(0): k(l)
chk_branch(0, 2)
k.stamp("g2f0")
k.fillq += r_thunks()
for b in range(14):
    hf = b // 7
    ld = f_block(b+3) if b + 3 < 14 else []
    ck = chk_lines(b+1) if b + 1 < 14 else []
    if b == 8:
        k.dswait("pw0")
        k("s_barrier")
        k.fillq += fin_thunks(0, False)
    for m in range(8):
        pos = 4*(b%7) + m//2; t = m & 1
        cc = "0" if pos == 0 else vr(G2A+16*t,16)
        k(f"v_mfma_f32_32x32x16_bf16 {vr(G2A+16*t,16)}, {ar(8*pos+4*t,4)}, {g2reg(pos)}, {cc}")
        if m < 4:
            if ld: ld[m]()
            k.drain_fill(3)
        else:
            if ck:
                if m == 4: k.vmwait(f"f{b+1}")
                for l in ck[(m-4)*3:(m-4)*3+3]: k(l)
                if m == 7:
                    chk_branch(b+1, min(b+3, 13))
                    k.drain_fill(2)
            else:
                k.drain_fill(3)
    if b % 7 == 6:
        k("s_nop 7\ns_nop 3")
        for j in range(8):
            k.ds(f"ds_write_b128 v{4 if hf == 0 else 13}, {vr(G2A+4*j,4)} offset:{32768 + j*1024}", f"pw{hf}")
        k.stamp(f"g2_{hf}")
k.drain_fill()
k.note(97, 60)
k.dswait()
k("s_barrier")
k.stamp("g2bar")
for t in fin_thunks(1, True): t()
if DIAG:
    k("s_waitcnt vmcnt(0)")
    k.stamp("end")
    k("s_memrealtime s[92:93]")
    k.flush_stamps()
    k(f"v_writelane_b32 v{k.VSTAMP}, s14, 62")
    k(f"v_writelane_b32 v{k.VSTAMP}, s92, 63")
    k(f"s_lshl_b32 s78, s2, 10\ns_add_u32 s78, s78, {STAMPS}\nv_lshlrev_b32 v16, 2, v0")
    k(f"buffer_store_dword v{k.VSTAMP}, v16, {srd(SWS)}, s78 offen")
    open("stampnames.txt", "w").write("\n".join(k.stampnames))
k.label("Lend")
k("s_endpgm")
slot_last.clear()
for st_ in stubs: st_()
lines = align_pass(k.lines) if opt("align", 1) else k.lines
open(OUT, "w").write(single_file("\n".join(lines) + "\n", 256, 256, 163840, 512, sgpr=102, accum=256))
```

```python
from kb import *
TRANS = ("v_exp_f32", "v_sin_f32", "v_cos_f32", "v_rcp_f32", "v_sqrt_f32", "v_rsq_f32", "v_log_f32")
class K2(K):
    def __init__(self, diag=False):
        super().__init__(diag)
        self.t = 0; self.pipe = 0
        self.lastV = -1000; self.vdone = []
        self.mode = None; self.bg = None; self.since = 0; self.gapD = 0
        self.VSP = 72; self.cntv = {}
    def _emit(self, ln):
        self.lines.append("    " + ln)
        m = ln.split()[0]
        if m.startswith(";"): return
        if m.startswith("v_mfma"):
            self.t = max(self.t, self.pipe)
            self.pipe = self.t + (32 if "32x32" in m else 16)
            self.t += 8; self.gapD = 0
        elif m in TRANS: self.t += 8
        elif m == "s_nop": self.t += 4 * (int(ln.split()[1]) + 1)
        elif m == "s_barrier": self.t += 40
        else: self.t += 4
        if m.startswith("ds_"): self.gapD += 1
        if m.startswith(("buffer_", "global_")): self.lastV = self.t
    def adv(self, c): self.t += c
    def vm(self, instr, tag="_"):
        self.cntv[tag] = self.cntv.get(tag, 0) + 1
        super().vm(instr, tag)
    def model_load(self, lat, ser=76):
        prev = self.vdone[-1] if self.vdone else 0
        d = max(self.t + lat, prev + ser); self.vdone.append(d); return d
    def inflight(self): return sum(1 for d in self.vdone if d > self.t)
    def _tick(self):
        if self.mode is None or self.infill or self.bg is None: return
        if self.mode == "valu":
            self.since += 1
            self.infill = True
            if self.since >= self.every:
                if self.bg.step(True): self.since = 0
            else:
                self.bg.vstep()
            self.infill = False
    def slack(self, maxn=8, maxD=3):
        if self.bg is None: return
        self.infill = True
        n = 0
        self.bg.vstep()
        while n < maxn and self.t + 4 <= self.pipe and self.bg.step(False, maxD): n += 1
        self.infill = False
    @contextlib.contextmanager
    def valu(self, every=2):
        old = (self.mode, self.every); self.mode = "valu"; self.every = every
        yield
        self.mode, self.every = old
```

```python
import sys, struct
from kb2 import *
DIAG = "diag" in sys.argv
OUT = [x for x in sys.argv[1:] if x.endswith(".s")][0]
def opt(name, default):
    for a in sys.argv:
        if a.startswith(name + "="): return int(a.split("=")[1])
    return default
def f2h(x): return hex(struct.unpack('<I', struct.pack('<f', float(x)))[0])

XT, HT, H1F, ST, CF, EP, STAMPS = 0x0, 0x400000, 0x600000, 0xD00000, 0xD08000, 0xD10000, 0xE00000
RA, RB, RC = 0, 65536, 131072
KC = RB; KCS = 4160; KCH = 4*KCS
UC = RB + 2*KCH; UCS = 4640; UCH = 2*UCS
XC = UC + 2*UCH
assert XC + 8192 <= RC
SCR = RC; SCW = 4352; SCH = 2176
EX = RC + 4*SCW
STG = EX + 8192
CP = RC; CPH = 16384
G1X = RC + 16384
QX = RC + 24576; SXX = QX + 2048
SPIN = 200000

k = K2(DIAG); k.VSTAMP = 143
TID, L16, VHT, LP, AX, W2V, LANE, RD2, CVA, CVB = 0, 1, 2, 3, 4, 8, 12, 13, 14, 15
RD0, T16, VU, VXC, PW, PR, XR, UR, DSK, ONE, W1V = 108, 110, 111, 112, 113, 114, 115, 116, 118, 120, 124
RDC, RDU, SG = 140, 141, 142
CS = 144
def w1reg(n, off=0, cnt=4):
    return vr(160+4*n+off, cnt) if n < 24 else ar(224+4*(n-24)+off, cnt)
WV = 3
SWS, SW1, SW2, SOUT, SH1 = 44, 52, 56, 60, 64
SLC = 48
TAG = 68
RG, FT, RG2, DT, ROT1, ROT2 = 72, 73, 74, 75, 76, 77
MASK, ONES = 80, 82
HST, H1B, RBK, HB1 = 86, 88, 89, 90
TW1, TW2, RING = 16, 24, 38
def srd(r): return f"s[{r}:{r+3}]"

def cmul_a(d, x, y, negim=False):
    return f"v_pk_mul_f32 {vr(d,2)}, {vr(x,2)}, {vr(y,2)} op_sel:[0,0] op_sel_hi:[1,0]" + (" neg_hi:[1,0]" if negim else "")
def cmul_b(d, x, y, conj=False, negim=False):
    m = "neg_lo:[1,0,0] neg_hi:[1,0,0]" if negim else ("neg_hi:[1,0,0]" if conj else "neg_lo:[1,0,0]")
    return f"v_pk_fma_f32 {vr(d,2)}, {vr(x,2)}, {vr(y,2)}, {vr(d,2)} op_sel:[1,1,0] op_sel_hi:[0,1,1] {m}"
def cmul(d, x, y, conj=False, negim=False):
    k(cmul_a(d, x, y, negim)); k(cmul_b(d, x, y, conj, negim))
def cmulN(lst, conj=False):
    for (d, x, y) in lst: k(cmul_a(d, x, y))
    for (d, x, y) in lst: k(cmul_b(d, x, y, conj))
def unp(d, s):
    return [f"v_and_b32 v{d+1}, s{MASK}, v{s}", f"v_lshlrev_b32 v{d}, 16, v{s}"]
def unpack(d, s):
    for l in unp(d, s): k(l)

LHIT, LCOLD, CAP = opt("lhit", 500), opt("lcold", 1000), opt("cap", 9)
SLOT = {f"R{i}": (RING+i, RD2, i*4096) for i in range(4)}
SLOT.update({f"B{i}": (-(RING+i), 117, i*4096) for i in range(4)})
SLOT.update({"C0": (SLC, RDC, 0), "C1": (SLC+1, RDC, 16384), "U0": (SLC+2, RDU, 0), "U1": (SLC+3, RDU, 4096)})
ORD = [x.split("=")[1] for x in sys.argv if x.startswith("ord=")]
ORD = ORD[0] if ORD else "ABCDEFGHabcdefghijklmn"
class BG:
    def __init__(s):
        s.G = [((1, ord(c)-65) if c.isupper() else (2, ord(c)-97)) for c in ORD]
        assert len(s.G) == 22
        s.cold = {(1,0),(1,1),(2,0),(2,1),(2,2),(2,3)}
        s.ii = 0; s.isub = 0; s.ci = 0; s.csub = 0
        s.slot = {}; s.land = {}
        s.avail = []
        s.busy = {}
        s.lasttag = {}
        s.hi = []; s.hv = []; s.hilock = False
        s.issue_ok = True; s.hiagpr_ok = False; s.cold_ok = True
        s.csn = 0; s.rdone = {}
        s.log = []; s.seen = set()
    def canV(s): return k.t - k.lastV >= k.VSP and k.inflight() < CAP
    def _dma(s):
        kind, g = s.G[s.ii]; i = s.isub
        if kind == 1: k.vm(f"buffer_load_dwordx4 v{W1V+i}, {srd(SW1)}, s{TW1+g} offen offset:{1024*i} lds", f"w{s.ii}")
        else: k.vm(f"buffer_load_dwordx4 v{W2V+i}, {srd(SW2)}, s{TW2+g} offen offset:{1024*i} lds", f"w{s.ii}")
        s.land[s.ii] = k.model_load(LCOLD, opt('scold', 230)) if (kind, g) in s.cold else k.model_load(LHIT)
        s.isub += 1
        if s.isub == 4: s.isub = 0; s.ii += 1
    def _free(s, force=False):
        for n in s.avail:
            b = s.busy.get(n, -1000)
            if b is not None and (force or k.t >= b): return n
        return None
    def _start(s, n):
        if n in s.lasttag: k.dswait(s.lasttag[n])
        k(f"s_mov_b32 m0, s{SLOT[n][0]}" if SLOT[n][0] > 0 else f"s_or_b32 m0, s{-SLOT[n][0]}, {RB}")
        s.slot[s.ii] = n; s.busy[n] = None
        s.log.append(f"I{ORD[s.ii]}:{n}@{k.t}")
        s._dma()
    def _read(s):
        n = s.ci; kind, g = s.G[n]; j = s.csub; sl = s.slot[n]; _, areg, off = SLOT[sl]
        if j == 0:
            k.vmwait(f"w{n}"); k.t = max(k.t, s.land[n]); s.log.append(f"C{ORD[n]}@{k.t}")
        if kind == 1:
            assert sl[0] == "R"
            i, rd = j >> 1, j & 1
            k.ds(f"ds_read_b64_tr_b16 {w1reg(4*g+i, 2*rd, 2)}, v{RD0+(i>>1)} offset:{off + (i&1)*1024 + rd*512}", f"r{n}")
        else:
            kk, t, rd = j >> 2, (j >> 1) & 1, j & 1
            k.ds(f"ds_read_b64_tr_b16 {ar(8*(2*g+kk)+4*t+2*rd,2)}, v{areg} offset:{off + (2*kk+rd)*1024 + t*512}", f"r{n}")
        s.csub += 1
        if s.csub == 8:
            s.csub = 0; s.ci += 1; s.busy[sl] = k.t + 150; s.lasttag[sl] = f"r{n}"
            if kind == 1: s.rdone[g] = (k.t + 150, f"r{n}")
    def _cs(s):
        g, i = s.csn >> 2, s.csn & 3
        if i == 0: k.dswait(s.rdone[g][1])
        c = "0" if s.csn == 0 else vr(CS,16)
        k(f"v_mfma_f32_32x32x16_bf16 {vr(CS,16)}, {w1reg(s.csn)}, {vr(ONE,4)}, {c}")
        s.csn += 1
    def _hi(s):
        it = s.hi.pop(0); it[1]()
    def consumable(s):
        if s.ci >= s.ii: return False
        kind, g = s.G[s.ci]
        return not (kind == 2 and g >= 10 and not s.hiagpr_ok)
    def vstep(s):
        if not s.canV(): return False
        if s.isub: s._dma(); return True
        if s.hv:
            it = s.hv[0]
            if it[4] is None or it[4](): s._hv(); return True
            if s.hilock: return False
        if s.issue_ok and not s.hilock and s.ii < len(s.G):
            n = s._free()
            if n and not (s.G[s.ii][0] == 1 and n[0] != "R") and (s.cold_ok or s.G[s.ii] not in s.cold): s._start(n); return True
        return False
    def _hv(s):
        it = s.hv.pop(0); it[0](); k.model_load(it[1], it[2]); s.hilock = it[3]
    def step(s, valu, maxD=3):
        if s.vstep(): return True
        if s.consumable() and (s.csub or k.t >= s.land[s.ci]) and (valu or k.gapD < maxD) and s._free(True) is None:
            s._read(); return True
        if s.hi:
            ty = s.hi[0][0]
            if ty == "A" or (ty == "D" and (valu or k.gapD < maxD)): s._hi(); return True
            if ty == "W" and k.t >= s.hi[0][2](): s._hi(); return True
        if valu and s.csn < 32 and k.t >= k.pipe and (s.csn >> 2) in s.rdone and k.t >= s.rdone[s.csn >> 2][0]:
            s._cs(); return True
        if s.consumable() and (s.csub or k.t >= s.land[s.ci]) and (valu or k.gapD < maxD):
            s._read(); return True
        return False
    def _forced(s, fn):
        old = k.infill; k.infill = True; fn(); k.infill = old
    def finish_issue(s):
        def f():
            pass
        s._forced(f)
    def issue_now(s, cnt):
        def f():
            for _ in range(cnt):
                s._start(s._free(True))
                while s.isub: s._dma()
        s._forced(f)
    def drain_hi(s):
        def f():
            while s.hi:
                s.vstep(); s._hi()
        s._forced(f)
    def force_hv(s, tag, cnt=4):
        def f():
            while k.cntv.get(tag, 0) < cnt:
                while s.isub: s._dma()
                s._hv()
            s.seen.add(tag)
        s._forced(f)
    def free_slots(s, names):
        def f():
            while s.isub: s._dma()
            while any(s.busy.get(n, 0) is None for n in names): s._read()
        s._forced(f)
    def need(s, pred):
        def f():
            last = max(i for i, g in enumerate(s.G) if pred(g))
            while s.ci <= last:
                while s.hilock: s._hv()
                while s.isub: s._dma()
                n = s._free(True)
                if s.ii <= last and n: s._start(n)
                else: s._read()
        s._forced(f)
    def finish_cs(s):
        def f():
            while s.csn < 32: s._cs()
        s._forced(f)
bg = BG(); k.bg = bg
def hiA(lines):
    for l in lines: bg.hi.append(("A", lambda l=l: k(l)))

stubs = []
def finish():
    if DIAG:
        k.mode = None
        k("s_waitcnt vmcnt(0)")
        k.stamp("end")
        k("s_memrealtime s[92:93]")
        k.flush_stamps()
        k(f"v_writelane_b32 v{k.VSTAMP}, s14, 62")
        k(f"v_writelane_b32 v{k.VSTAMP}, s92, 63")
        k(f"s_lshl_b32 s78, s2, 10\ns_add_u32 s78, s78, {STAMPS}\nv_lshlrev_b32 v16, 2, v0")
        k(f"buffer_store_dword v{k.VSTAMP}, v16, {srd(SWS)}, s78 offen")
        open(OUT[:-2] + ".names", "w").write("\n".join(k.stampnames))
        if opt("dbg", 0):
            sel = [k.stampnames.index(n) for n in ("start","karg","pub","kdone","ubarA","cepi0","cepi1","g1w0","g1_0","g1_1","g2start","g2_0","g2_1","end") if n in k.stampnames]
            k("s_load_dwordx2 s[40:41], s[0:1], 104")
            k(f"v_readlane_b32 s78, v{k.VSTAMP}, 0\ns_and_b32 s79, s14, 0xfffff\ns_mul_i32 s79, s79, 22\ns_sub_u32 s81, s79, s78")
            k("v_mov_b32 v17, 0")
            for i, sidx in enumerate(sel):
                k(f"v_readlane_b32 s83, v{k.VSTAMP}, {sidx}\ns_add_u32 s83, s83, s81\ns_nop 3\nv_writelane_b32 v17, s83, {i}")
            k("s_sub_u32 s83, s92, s14\nv_writelane_b32 v17, s83, 14")
            k("s_not_b32 s83, s79\nv_writelane_b32 v17, s83, 15")
            k(f"v_lshlrev_b32 v16, 2, v{LANE}\ns_mov_b64 exec, 0xffff\ns_waitcnt lgkmcnt(0)\nglobal_atomic_umax v16, v17, s[40:41]")
    k.label("Lend")
    k("s_endpgm")
    for st_ in stubs: st_()
    if opt("padk", 0):
        for _ in range(opt("padk", 0)*128): k("v_fma_f32 v1, v1, v1, v1")
        k("s_endpgm")
    k.label("Lcodeend")
    lines = align_pass(k.lines) if opt("align", 1) else k.lines
    open(OUT, "w").write(single_file("\n".join(lines) + "\n", 256, 256, 163840, 512, sgpr=102, accum=256))
    sys.exit(0)
STOP = [x.split("=")[1] for x in sys.argv if x.startswith("stop=")]
_st = k.stamp
def stamp2(name=""):
    _st(name)
    if STOP and name == STOP[0]: finish()
k.stamp = stamp2
k.label("Lstart")
k("""
s_load_dwordx16 s[16:31], s[0:1], 0
s_load_dwordx8 s[32:39], s[0:1], 64
s_load_dwordx2 s[40:41], s[0:1], 96
s_load_dwordx2 s[42:43], s[0:1], 112
s_getpc_b64 s[90:91]
s_cmp_ge_u32 s2, 256
s_cbranch_scc1 Lend
""")
if DIAG:
    k("s_memrealtime s[14:15]")
    k(f"v_mov_b32 v{k.VSTAMP}, 0")
k.stamp("start")
k(f"""
s_lshl_b32 s78, s2, 10
s_and_b32 s78, s78, 0x6000
v_lshrrev_b32 v51, 2, v0
v_lshl_add_u32 v139, v51, 7, s78
v_min_u32 v139, Lcodeend-Lstart-48, v139
""")
k.vm("global_load_dword v138, v139, s[90:91]", "code")
k(f"""
s_and_b32 s{RBK}, s2, 7
s_lshl_b32 s{RBK}, s{RBK}, 5
s_lshr_b32 s79, s2, 3
s_add_u32 s{RBK}, s{RBK}, s79
s_lshl_b32 s84, s{RBK}, 13
v_and_b32 v50, 1, v0
v_lshlrev_b32 v50, 12, v50
v_lshl_add_u32 v50, v51, 4, v50
v_add_u32 v50, s84, v50
v_and_b32 v{LANE}, 63, v0
v_lshlrev_b32 v{L16}, 4, v{LANE}
v_lshrrev_b32 v52, 6, v0
v_lshl_add_u32 v53, v52, 11, v{L16}
v_add_u32 v53, s84, v53
s_waitcnt lgkmcnt(0)
""")
for i in range(4):
    k.vm(f"global_load_dwordx4 {vr(24+4*i,4)}, v50, s[16:17] offset:{1024*i}", "xt")
for i in range(2):
    k.vm(f"global_load_dwordx4 {vr(16+4*i,4)}, v53, s[16:17] offset:{1024*i}", "xs")
k.stamp("karg")
k(f"""
s_mov_b32 s79, {EP}
s_load_dwordx2 s[{TAG}:{TAG+1}], s[42:43], s79
s_lshl_b32 s78, s2, 9
v_lshl_add_u32 v54, v0, 1, s78
""")
for i in range(6):
    k.vm(f"global_load_ushort v{40+i}, v54, s[{18+2*i}:{19+2*i}]", "par")
k(f"""
v_readfirstlane_b32 s{WV}, v52
s_lshr_b32 s{DT}, s2, 5
s_min_u32 s83, s{DT}, 6
s_and_b32 s{FT}, s2, 1
s_mul_i32 s{FT}, s{FT}, 7
s_add_u32 s{FT}, s{FT}, s83
s_bfe_u32 s81, s2, 0x20003
s_lshl_b32 s78, s2, 2
s_load_dword s70, s[30:31], s78
s_load_dword s71, s[32:33], s78
s_mul_i32 s78, s2, 7168
v_and_b32 v139, 127, v0
v_lshrrev_b32 v139, 1, v139
v_min_u32 v139, 55, v139
v_lshl_add_u32 v139, v139, 7, s78
s_cmp_lt_u32 s{WV}, 2
s_cselect_b32 s94, s36, s38
s_cselect_b32 s95, s37, s39
""")
if opt("pf1", 1): k.vm("global_load_dword v137, v139, s[94:95]", "pf1")
if opt("pfx", 0):
    k(f"""
    s_xor_b32 s78, s84, {128*8192}
    v_lshl_add_u32 v128, v51, 7, s78
    v_xor_b32 v135, {4*512}, v54
    """)
    k.vm("global_load_dword v137, v128, s[16:17]", "pfx")
    for i in range(6):
        k.vm(f"global_load_ushort v137, v135, s[{18+2*i}:{19+2*i}]", "pfx")
k.stamp("iss0")
k(f"""
s_mov_b32 s{SWS}, s42
s_mov_b32 s{SWS+1}, s43
s_mov_b32 s{SWS+2}, 0x10000000
s_mov_b32 s{SWS+3}, 0x20000
v_lshrrev_b32 v53, 3, v0
v_lshlrev_b32 v53, 15, v53
v_and_b32 v54, 7, v0
v_lshl_add_u32 v{VHT}, v54, 4, v53
v_mov_b32 v68, -1
v_mov_b32 v69, -1
v_mov_b32 v70, -1
v_mov_b32 v71, -1
s_lshl_b32 s{HST}, s2, 7
s_add_u32 s{HST}, s{HST}, {HT}
s_add_u32 s{HST+1}, s{HST}, 0x100000
""")
def clrh():
    k.vm(f"buffer_store_dwordx4 v[68:71], v{VHT}, {srd(SWS)}, s{HST} offen sc1", "clrh")
    k.vm(f"buffer_store_dwordx4 v[68:71], v{VHT}, {srd(SWS)}, s{HST+1} offen sc1", "clrh")
CLRE = opt("clre", 1)
if CLRE: clrh()
k(f"""
s_mov_b32 s{MASK}, 0xffff0000
s_mov_b32 s{ONES}, 0x3f803f80
s_and_b32 s{RG}, s2, 6
s_lshl_b32 s{RG}, s{RG}, 1
s_add_u32 s{RG}, s{RG}, s81
s_and_b32 s78, s2, 1
s_lshl_b32 s{RG2}, s{RG}, 1
s_add_u32 s{RG2}, s{RG2}, s78
s_lshl_b32 s{ROT1}, s81, 1
s_add_u32 s{ROT1}, s{ROT1}, s{DT}
s_mov_b32 s{ROT2}, s{ROT1}
s_cmp_ge_u32 s{ROT2}, 7
s_cselect_b32 s84, 7, 0
s_sub_u32 s{ROT2}, s{ROT2}, s84
s_mov_b32 s{SW1}, s36
s_mov_b32 s{SW1+1}, s37
s_mov_b32 s{SW1+2}, {512*1792*2}
s_mov_b32 s{SW1+3}, 0x20000
s_mov_b32 s{SW2}, s38
s_mov_b32 s{SW2+1}, s39
s_mov_b32 s{SW2+2}, {512*1792*2}
s_mov_b32 s{SW2+3}, 0x20000
s_mov_b32 s{SOUT}, s40
s_mov_b32 s{SOUT+1}, s41
s_mov_b32 s{SOUT+2}, 0x200000
s_mov_b32 s{SOUT+3}, 0x20000
s_mov_b32 s{SH1}, s42
s_mov_b32 s{SH1+1}, s43
s_cmp_lt_u32 s{DT}, 7
s_cselect_b32 s{SH1+2}, 0x10000000, 0
s_mov_b32 s{SH1+3}, 0x20000
v_lshrrev_b32 v53, 2, v{LANE}
v_mul_u32_u24 v{W1V}, 3584, v53
v_and_b32 v54, 3, v{LANE}
v_lshl_add_u32 v{W1V}, v54, 4, v{W1V}
v_add_u32 v{W1V+1}, {57344-1024}, v{W1V}
v_add_u32 v{W1V+2}, {2*(57344-1024)}, v{W1V}
v_add_u32 v{W1V+3}, {3*(57344-1024)}, v{W1V}
v_bfe_u32 v55, v{LANE}, 2, 3
v_lshlrev_b32 v{W2V}, 10, v55
v_lshrrev_b32 v55, 5, v{LANE}
v_lshl_add_u32 v{W2V}, v55, 6, v{W2V}
v_lshl_add_u32 v{W2V}, v54, 4, v{W2V}
v_add_u32 v{W2V+1}, 7168, v{W2V}
v_add_u32 v{W2V+2}, {2*7168}, v{W2V}
v_add_u32 v{W2V+3}, {3*7168}, v{W2V}
s_lshl_b32 s{RING}, s{WV}, 14
s_add_u32 s{RING+1}, s{RING}, 4096
s_add_u32 s{RING+2}, s{RING}, 8192
s_add_u32 s{RING+3}, s{RING}, 12288
s_mul_i32 s84, s{WV}, {28*16384}
s_lshl_b32 s78, s{DT}, 7
s_add_u32 s84, s84, s78
s_lshl_b32 s78, s{ROT2}, 16
s_add_u32 s{TW2}, s78, s84
s_add_u32 s85, s84, {7*65536}
""")
for g4 in range(7):
    if g4:
        k(f"s_add_u32 s{TW2+2*g4}, s{TW2+2*g4-2}, 65536")
        k(f"s_cmp_ge_u32 s{TW2+2*g4}, s85")
        k(f"s_cselect_b32 s{TW2+2*g4}, s84, s{TW2+2*g4}")
    k(f"s_add_u32 s{TW2+2*g4+1}, s{TW2+2*g4}, 32768")
k(f"""
s_lshl_b32 s84, s{FT}, 8
s_lshl_b32 s85, s{WV}, 6
s_add_u32 s84, s84, s85
s_lshr_b32 s85, s{WV}, 1
""")
for g in range(8):
    k(f"s_xor_b32 s78, s85, {g}")
    k(f"s_add_u32 s78, s78, s{ROT1}")
    k(f"s_and_b32 s78, s78, 7")
    k(f"s_mul_i32 s78, s78, {4*57344}")
    k(f"s_add_u32 s{TW1+g}, s78, s84")
bg.avail = ["R0", "R1", "R2", "R3"]
if opt("w0", 0): bg.issue_now(opt("w0", 0))
k(f"""
s_lshl_b32 s78, s{FT}, 13
s_lshl_b32 s79, s{WV}, 11
s_add_u32 s78, s78, s79
s_add_u32 s78, s78, {H1F}
s_mul_i32 s{H1B}, s{RG2}, 114688
s_add_u32 s{H1B}, s{H1B}, s78
s_xor_b32 s79, s{RG2}, 1
s_mul_i32 s{HB1}, s79, 114688
s_add_u32 s{HB1}, s{HB1}, s78
s_lshl_b32 s{SLC}, s{WV}, 12
s_add_u32 s{SLC}, s{SLC}, {RC}
s_add_u32 s{SLC+1}, s{SLC}, 16384
s_lshl_b32 s{SLC+2}, s{WV}, 13
s_add_u32 s{SLC+2}, s{SLC+2}, {RA+32768}
s_add_u32 s{SLC+3}, s{SLC+2}, 4096
v_lshrrev_b32 v{LP}, 5, v{LANE}
v_lshlrev_b32 v{LP}, 8, v{LP}
v_bfe_u32 v55, v{LANE}, 2, 2
v_lshl_add_u32 v{LP}, v55, 6, v{LP}
v_bfe_u32 v55, v{LANE}, 4, 1
v_lshl_add_u32 v{LP}, v55, 5, v{LP}
v_lshl_add_u32 v{LP}, v54, 3, v{LP}
v_add_u32 v{RD2}, s{RING}, v{LP}
v_add_u32 v{RDC}, s{SLC}, v{LP}
v_add_u32 v117, {RB}, v{RD2}
v_add_u32 v{RDU}, s{SLC+2}, v{LP}
s_and_b32 s78, s{WV}, 1
s_lshl_b32 s78, s78, 11
v_add_u32 v{RD0}, s78, v{RD2}
v_xor_b32 v{RD0+1}, 2048, v{RD0}
s_lshl_b32 s79, s85, 14
s_add_u32 s78, s78, s79
v_add_u32 v{AX}, s78, v{LP}
v_xor_b32 v{AX+1}, 2048, v{AX}
v_xor_b32 v{AX+2}, 16384, v{AX}
v_xor_b32 v{AX+3}, {2048+16384}, v{AX}
v_lshlrev_b32 v{T16}, 4, v0
v_mov_b32 v{ONE}, s{ONES}
v_mov_b32 v{ONE+1}, s{ONES}
v_mov_b32 v{ONE+2}, s{ONES}
v_mov_b32 v{ONE+3}, s{ONES}
v_bfe_u32 v55, v0, 1, 1
v_lshlrev_b32 v56, 4, v51
v_and_b32 v57, 1, v0
v_lshl_add_u32 v56, v57, 3, v56
v_mul_u32_u24 v{VU}, {UCH}, v55
v_sub_u32 v{VU}, v{VU}, v56
v_add_u32 v{VU}, {UC+16+1008}, v{VU}
v_lshl_add_u32 v{VXC}, v55, 12, v56
v_add_u32 v{VXC}, {XC}, v{VXC}
v_mul_u32_u24 v53, 0x020202, v55
v_lshl_or_b32 v53, v53, 8, v53
v_add_u32 v53, 0x05040100, v53
v_lshlrev_b32 v51, 16, v51
v_lshl_add_u32 v51, v54, 4, v51
s_and_b32 s79, s{WV}, 1
s_lshl_b32 s79, s79, 8
s_mul_i32 s81, s85, {KCH}
s_add_u32 s81, s81, s79
s_add_u32 s81, s81, {KC}
s_mul_i32 s83, s85, {UCH}
s_add_u32 s83, s83, s79
s_add_u32 s83, s83, {UC+16+448}
v_mul_u32_u24 v55, {KCS}, v54
v_bfe_u32 v56, v{LANE}, 2, 2
v_lshrrev_b32 v58, 4, v{LANE}
v_add_u32 v56, v56, v58
v_lshl_add_u32 v55, v56, 4, v55
v_add_u32 v{CVA}, s81, v55
v_mul_u32_u24 v55, {UCS}, v57
v_lshl_add_u32 v55, v58, 4, v55
v_bfe_u32 v56, v{LANE}, 1, 3
v_lshlrev_b32 v56, 6, v56
v_sub_u32 v55, v55, v56
v_add_u32 v{CVB}, s83, v55
v_add_u32 v{PW}, s{SLC}, v{L16}
v_lshlrev_b32 v{PR}, 10, v52
v_lshl_add_u32 v{PR}, v54, 8, v{PR}
v_bfe_u32 v55, v0, 3, 3
v_lshl_add_u32 v{PR}, v55, 5, v{PR}
v_bfe_u32 v55, v0, 2, 1
v_lshl_add_u32 v{PR}, v55, 13, v{PR}
v_add_u32 v{PR}, {CP}, v{PR}
v_lshrrev_b32 v56, 3, v0
v_lshlrev_b32 v56, 6, v56
v_lshl_add_u32 v56, v54, 4, v56
v_lshl_add_u32 v{XR}, v55, 12, v56
v_add_u32 v{XR}, {XC}, v{XR}
v_mul_u32_u24 v{UR}, {UCH}, v55
v_sub_u32 v{UR}, v{UR}, v56
v_add_u32 v{UR}, {UC + UCS + 16 + 2*2040 - 2048}, v{UR}
v_lshrrev_b32 v56, 5, v0
v_mul_u32_u24 v56, {UCS}, v56
v_and_b32 v60, 31, v0
v_lshl_add_u32 v56, v60, 4, v56
v_add_u32 v56, {UC+16+4080}, v56
v_lshrrev_b32 v60, 2, v60
v_mul_u32_u24 v60, {KCS}, v60
v_min_u32 v59, 2, v54
v_lshl_add_u32 v59, v59, 4, v60
v_add_u32 v59, {KC}, v59
v_cmp_gt_u32 vcc, 128, v0
v_mov_b32 v60, 0
v_mov_b32 v61, 0
v_cndmask_b32 v56, v59, v56, vcc
v_mov_b32 v62, 0
v_mov_b32 v63, 0
ds_write_b128 v56, v[60:63]
s_mul_i32 s78, s{WV}, {SCW}
s_add_u32 s78, s78, {SCR}
v_add_u32 v46, s78, v{L16}
v_lshrrev_b32 v47, 2, v{LANE}
v_lshlrev_b32 v47, 4, v47
v_bfe_u32 v48, v{LANE}, 1, 1
v_mul_u32_u24 v48, {SCH}, v48
v_add3_u32 v47, v47, v48, s78
v_lshl_add_u32 v47, v57, 3, v47
s_lshl_b32 s78, s{WV}, 11
s_add_u32 s78, s78, {EX}
v_add_u32 v48, s78, v{L16}
s_xor_b32 s78, s{WV}, 1
s_lshl_b32 s78, s78, 11
s_add_u32 s78, s78, {EX}
v_add_u32 v49, s78, v{L16}
s_add_u32 s78, s81, {3*KCS + 48}
v_and_b32 v59, 15, v{LANE}
v_lshl_add_u32 v59, v59, 4, s78
v_lshrrev_b32 v130, 5, v{LANE}
v_lshl_add_u32 v130, v130, 9, v59
v_bfe_u32 v131, v{LANE}, 4, 1
v_lshl_add_u32 v130, v131, 3, v130
v_lshl_add_u32 v131, v58, 9, v59
v_lshrrev_b32 v132, 7, v0
v_mul_u32_u24 v132, {KCH}, v132
v_and_b32 v59, 127, v0
v_lshl_add_u32 v132, v59, 5, v132
v_add_u32 v132, {KC+40}, v132
s_lshl_b32 s78, s{WV}, 4
s_add_u32 s78, s78, {STG}
v_mov_b32 v133, s78
v_add_u32 v134, {STG}, v{L16}
s_lshl_b32 s78, s2, 6
s_lshl_b32 s79, s{WV}, 2
s_add_u32 s78, s78, s79
s_add_u32 s78, s78, {CF}
v_mov_b32 v135, s78
""")
k.stamp("setup0")
k("s_waitcnt lgkmcnt(0)")
k.stamp("ep")
k(f"""
s_add_u32 s{TAG}, s{TAG}, 1
s_lshl_b32 s84, s{RBK}, 6
s_lshl_b32 s78, s71, 16
s_and_b32 s79, s71, s{MASK}
v_mov_b32 v{DSK}, s78
v_mov_b32 v{DSK+1}, s79
v_cmp_eq_u32 vcc, 1, v55
s_lshl_b32 s78, s70, 16
s_and_b32 s79, s70, s{MASK}
v_cndmask_b32 v{DSK}, v{DSK}, v{DSK+1}, vcc
s_cmp_lt_u32 s{WV}, 2
s_cselect_b32 s78, s78, s79
v_mov_b32 v136, 0x3fb8aa3b
v_mul_f32 v136, s78, v136
v_exp_f32 v136, v136
v_xor_b32 v{SG}, s{TAG}, v0
v_and_b32 v{SG}, 1, v{SG}
v_mul_u32_u24 v{SG}, 0x10001, v{SG}
v_lshlrev_b32 v{SG}, 15, v{SG}
v_mov_b32 v129, s{TAG}
""")
for j in range(4):
    k(f"v_mov_b32 v{72+4*j+2}, s{TAG}")
    k(f"v_mov_b32 v{72+4*j+3}, s{TAG+1}")
k(f"""
v_mov_b32 v67, s{TAG}
v_cvt_pk_bf16_f32 v136, v136, v136
v_lshlrev_b32 v136, 16, v136
s_mov_b32 s92, 0x3b000000
s_mov_b32 s93, 0x3b000000
""")
k.stamp("setup")
k.vmwait("xt")
k.stamp("xload")
for j in range(4):
    G = 72 + 4*j
    k(f"v_perm_b32 v{G}, v{28+j}, v{24+j}, v53")
    k(f"v_perm_b32 v{G+1}, v{36+j}, v{32+j}, v53")
    k(f"s_add_u32 s78, s84, {XT + j*16384}")
    k.vm(f"buffer_store_dwordx4 {vr(G,4)}, v51, {srd(SWS)}, s78 offen sc1", "xtst")
k.stamp("xst")
k.vmwait("xs")
S, Qq = 56, 58
for r in range(2):
    k(f"v_dot2_f32_bf16 v{S+r}, v{16+4*r}, s{ONES}, 0")
    k(f"v_dot2_f32_bf16 v{Qq+r}, v{16+4*r}, v{16+4*r}, 0")
for i in range(1, 4):
    for r in range(2):
        k(f"v_dot2_f32_bf16 v{S+r}, v{16+4*r+i}, s{ONES}, v{S+r}")
        k(f"v_dot2_f32_bf16 v{Qq+r}, v{16+4*r+i}, v{16+4*r+i}, v{Qq+r}")
k("s_nop 2")
for ctl in ["row_shr:1 row_mask:0xf bank_mask:0xf bound_ctrl:0", "row_shr:2 row_mask:0xf bank_mask:0xf bound_ctrl:0",
            "row_shr:4 row_mask:0xf bank_mask:0xf bound_ctrl:0", "row_shr:8 row_mask:0xf bank_mask:0xf bound_ctrl:0",
            "row_bcast:15 row_mask:0xa bank_mask:0xf", "row_bcast:31 row_mask:0xc bank_mask:0xf"]:
    for r in range(4):
        k(f"v_add_f32_dpp v{S+r}, v{S+r}, v{S+r} {ctl}")
k(f"""
v_pk_mul_f32 v[56:57], v[56:57], s[92:93]
v_pk_mul_f32 v[58:59], v[58:59], s[92:93]
v_pk_fma_f32 v[58:59], v[56:57], v[56:57], v[58:59] neg_lo:[1,0,0] neg_hi:[1,0,0]
v_cvt_pk_bf16_f32 v66, v56, v57
v_cvt_pk_bf16_f32 v60, v58, v59
v_pk_max_i16 v60, v60, 0
""")
unpack(58, 60)
k("v_add_f32 v58, 0x3727c5ac, v58\nv_add_f32 v59, 0x3727c5ac, v59\nv_cvt_pk_bf16_f32 v60, v58, v59")
unpack(58, 60)
k("v_sqrt_f32 v58, v58\nv_sqrt_f32 v59, v59\ns_nop 0\nv_cvt_pk_bf16_f32 v60, v58, v59")
unpack(58, 60)
k(f"""
v_rcp_f32 v64, v58
v_rcp_f32 v65, v59
s_mov_b32 exec_lo, 0
s_mov_b32 exec_hi, 0x80000000
""")
k.ds("ds_write_b128 v133, v[64:67]")
k("s_mov_b64 exec, -1")
k.dswait()
k("s_barrier")
k(f"""
s_cmp_lg_u32 s{WV}, 0
s_cbranch_scc1 Lnopub
s_mov_b64 exec, 0xf
ds_read_b128 v[64:67], v134
s_add_u32 s78, s84, {ST}
s_waitcnt lgkmcnt(0)
buffer_store_dwordx4 v[64:67], v{L16}, {srd(SWS)}, s78 offen sc1
s_mov_b64 exec, -1
""")
k.label("Lnopub")
k.stamp("pub")
k.vmwait("par")
k.stamp("par")
k.t += 3000; k.vdone = [k.t + opt('ack', 1200)]; T_PUB = k.t
for i_ in list(bg.land): bg.land[i_] = k.t + 600
if not CLRE: clrh()
def cf_pub():
    k.vmwait("clrh")
    k.vm(f"buffer_store_dword v129, v135, {srd(SWS)}, 0 offen sc1", "cf")
if CLRE: cf_pub()
PK = [56, 60, 100, 104]
FR = 160
def kmf(acc, ta, tb_, s):
    c = "0" if s == 0 else vr(acc,4)
    return f"v_mfma_f32_16x16x32_bf16 {vr(acc,4)}, {ar(FR+16*ta+4*s,4)}, {ar(FR+16*tb_+4*s,4)}, {c}"
KA = 32
with k.valu(opt("fk", 2)):
    for i in range(6):
        k(f"v_lshlrev_b32 v{40+i}, 16, v{40+i}")
    k(f"""
    s_mov_b32 s78, 0x3fb8aa3b
    s_mov_b32 s79, 0x3e22f983
    v_pk_mul_f32 v[40:41], v[40:41], v[136:137] op_sel_hi:[1,0]
    v_pk_mul_f32 v[42:43], v[42:43], v[136:137] op_sel_hi:[1,0]
    v_pk_mul_f32 v[40:41], v[40:41], s[78:79]
    """)
    WC = 52
    cmul(WC, 44, 42, negim=True)
    E = {}
    free = list(range(72, 100, 2))
    def newE(l):
        E[l] = free.pop(0); return E[l]
    def relE(*ls):
        for l in ls: free.append(E.pop(l))
    for l in (8, 128, 1): newE(l)
    k(f"v_mul_f32 v16, {f2h(8)}, v40\nv_mul_f32 v17, {f2h(8)}, v41\nv_mul_f32 v18, {f2h(128)}, v40\nv_mul_f32 v19, {f2h(128)}, v41")
    k(f"v_fract_f32 v17, v17\nv_fract_f32 v19, v19\nv_fract_f32 v41, v41")
    for l, a_ in ((8,16),(128,18),(1,40)):
        k(f"v_cos_f32 v{E[l]}, v{a_+1}\nv_sin_f32 v{E[l]+1}, v{a_+1}\nv_exp_f32 v{a_}, v{a_}")
    for l, a_ in ((8,16),(128,18),(1,40)):
        k(f"v_pk_mul_f32 {vr(E[l],2)}, {vr(E[l],2)}, {vr(a_,2)} op_sel_hi:[1,0]")
    def tile_reads(t):
        for s in range(4):
            for rd in range(2):
                k.ds(f"ds_read_b64_tr_b16 {ar(FR+16*t+4*s+2*rd,2)}, v47 offset:{512*s+256*rd}", f"kf{t}")
    pks = [0]
    def pack8(vals, hf):
        for ri in range(2):
            P = PK[pks[0] % 4]; pks[0] += 1
            for i in range(4):
                k(f"v_cvt_pk_bf16_f32 v{P+i}, {vals[2*i][ri]}, {vals[2*i+1][ri]}")
            k.ds(f"ds_write_b128 v46, {vr(P,4)} offset:{hf*SCH+1024*ri}")
            k.adv(12)
    cmul(54, WC, E[128], conj=True)
    newE(16); cmul(E[16], E[8], E[8])
    k(f"""
    s_bitcmp1_b32 s{WV}, 0
    s_cselect_b64 vcc, -1, 0
    v_cndmask_b32 v16, v{WC}, v54, vcc
    v_cndmask_b32 v17, v{WC+1}, v55, vcc
    v_cndmask_b32 v44, v54, v{WC}, vcc
    v_cndmask_b32 v45, v55, v{WC+1}, vcc
    """)
    GB = 16
    for t in range(2):
        if t == 1:
            k(f"v_mov_b32 v{GB}, v44\nv_mov_b32 v{GB+1}, v45")
        cmul(GB+2, GB, E[8], conj=True)
        for hf in range(2):
            if hf == 1:
                cmulN([(GB, GB+12, E[16]), (GB+2, GB+14, E[16])], conj=True)
            for i in range(1, 4):
                cmulN([(GB+4*i, GB+4*i-4, E[16]), (GB+4*i+2, GB+4*i-2, E[16])], conj=True)
            pack8([(f"v{GB+2*i}", f"v{GB+2*i+1}") for i in range(8)], hf)
        tile_reads(t)
    if not CLRE: cf_pub()
    relE(16)
    free += [16,18,20,22,24,26,28,30,40,42,44]
    def mk(*specs):
        lst = []
        for (l, a_, b_) in specs:
            assert a_ + b_ == l
            lst.append((newE(l), E[a_], E[b_]))
        cmulN(lst)
    def ev(l):
        return ("1.0", "0") if l == 0 else (f"v{E[l]}", f"v{E[l]+1}")
    mk((2,1,1),(256,128,128)); mk((3,2,1),(4,2,2),(512,256,256)); mk((5,4,1),(6,4,2),(7,4,3))
    pack8([ev(l) for l in range(8)], 0)
    relE(1,3,5,7,128)
    mk((258,256,2),(260,256,4),(262,256,6),(264,256,8))
    pack8([ev(l) for l in (256,256,258,260,260,260,262,264)], 1)
    tile_reads(2)
    relE(2,6,258,260,262,264)
    mk((516,512,4),(520,512,8),(1024,512,512),(768,512,256)); mk((1032,1024,8),(1280,1024,256),(1536,1024,512),(1792,1024,768)); mk((1288,1280,8),(772,768,4),(776,768,8))
    mk((1544,1536,8),(1800,1792,8))
    k.dswait("kf2")
    a0 = [kmf(acc, 2, tb_, s) for s in range(4) for (acc, tb_) in ((KA,1),(64,0))]
    for hf, ls in enumerate(((512,516,1024,1032,516,520,1280,1288), (768,772,1536,1544,772,776,1792,1800))):
        vals = [ev(l) for l in ls]
        for ri in range(2):
            P = PK[pks[0] % 4]; pks[0] += 1
            for i in range(4):
                k(f"v_cvt_pk_bf16_f32 v{P+i}, {vals[2*i][ri]}, {vals[2*i+1][ri]}")
                if i & 1: k(a0.pop(0))
            k.ds(f"ds_write_b128 v46, {vr(P,4)} offset:{hf*SCH+1024*ri}")
    tile_reads(3)
k.stamp("kchain")
def poll_issue(P, its, tag):
    for n, it in enumerate(its):
        k(f"s_lshl_b32 s78, s2, 14")
        k(f"s_add_u32 s78, s78, {XT + it*4096}")
        k(f"s_mov_b32 s79, {ST + it*4096}")
        k.vm(f"buffer_load_dwordx4 {vr(P+8*n,4)}, v{T16}, {srd(SWS)}, s78 offen sc1", tag); k.model_load(1200)
        k.vm(f"buffer_load_dwordx4 {vr(P+8*n+4,4)}, v{T16}, {srd(SWS)}, s79 offen sc1", tag); k.model_load(1200)
    if tag == "B":
        k(f"s_mov_b32 s79, {CF}")
        k(f"v_lshlrev_b32 v102, 6, v0")
        k.vm(f"buffer_load_dwordx4 v[104:107], v102, {srd(SWS)}, s79 offen sc1", tag); k.model_load(1200)
def poll_check(P, its, tag):
    L = f"Lp{tag}"
    def cmps():
        for n in range(2):
            k(f"v_cmpx_eq_u64 vcc, s[{TAG}:{TAG+1}], {vr(P+8*n+2,2)}")
            k(f"v_cmpx_eq_u32 vcc, s{TAG}, v{P+8*n+7}")
        if tag == "B":
            for n in range(4): k(f"v_cmpx_eq_u32 vcc, s{TAG}, v{104+n}")
        k("s_cmp_eq_u64 exec, -1\ns_mov_b64 exec, -1")
    k.vmwait(tag)
    cmps()
    k(f"s_cbranch_scc0 {L}")
    k.label(f"{L}_ret")
    k("s_nop 1")
    def stub():
        k.label(L)
        k(f"s_add_u32 s97, s97, 1\ns_cmp_ge_u32 s97, {SPIN}\ns_cbranch_scc1 {L}_ret")
        poll_issue(P, its, tag)
        k("s_waitcnt vmcnt(0)")
        cmps()
        k(f"s_cbranch_scc0 {L}\ns_branch {L}_ret")
    stubs.append(stub)
    k.note(97, 56 if tag == "A" else 57)
def ln_apply(P, its, T):
    for n, it in enumerate(its):
        X = P + 8*n; Gr = X + 4
        k.ds(f"ds_write_b64 v{VXC}, {vr(X,2)} offset:{1024*it}")
        O = T + 10 + 2*n
        qp = ["[0,2,0,2]", "[1,3,1,3]"]
        for d in range(2):
            k(f"v_mov_b32_dpp v{T+8+d}, v{Gr+2} quad_perm:{qp[d]} row_mask:0xf bank_mask:0xf")
        for d in range(2):
            unpack(T+4*d, X+d)
            unpack(T+4*d+2, T+8+d)
            k(f"v_pk_add_f32 {vr(T+4*d,2)}, {vr(T+4*d,2)}, {vr(T+4*d+2,2)} neg_lo:[0,1] neg_hi:[0,1]")
            k(f"v_cvt_pk_bf16_f32 v{T+4*d+2}, v{T+4*d}, v{T+4*d+1}")
        for d in range(2):
            unpack(T+4*d, T+4*d+2)
        for d in range(2):
            k(f"v_mul_f32_dpp v{T+4*d+1}, v{Gr+1}, v{T+4*d+1} quad_perm:{qp[d]} row_mask:0xf bank_mask:0xf")
            k(f"v_mul_f32_dpp v{T+4*d}, v{Gr}, v{T+4*d} quad_perm:{qp[d]} row_mask:0xf bank_mask:0xf")
        for d in range(2):
            k(f"v_cvt_pk_bf16_f32 v{O+1-d}, v{T+4*d+1}, v{T+4*d}")
        k.ds(f"ds_write_b64 v{VU}, {vr(O,2)} offset:{1024*(3-it)}")
        k.ds(f"ds_write_b64 v{VU}, {vr(O,2)} offset:{1024*(3-it) + UCS + 8}")
def idle(n):
    end = k.t + n
    old = k.infill; k.infill = True
    while k.t < end:
        if not bg.step(True): k.t += 8
    k.infill = old
PA, PB_ = 72, 32
k("s_mov_b32 s97, 0")
PAAT = opt("paat", 0)
if PAAT == 0: bg.finish_issue(); poll_issue(PA, (0,1), "A")
k("""
s_mov_b32 s92, 0xffff0000
s_mov_b32 s93, 0xffff0000
s_mov_b32 s94, 0xaaaaaaaa
s_mov_b32 s95, 0xaaaaaaaa
""")
k.ds(f"ds_write_b128 v48, {vr(KA,4)}")
idle(100)
k.dswait("kf3")
for s in range(4): k(kmf(KA+4, 3, 1, s))
for s in range(4): k(kmf(68, 3, 0, s))
k("s_nop 3")
k.ds(f"ds_write_b128 v48, {vr(KA+4,4)} offset:1024", "exw")
idle(60)
k.dswait("exw")
k("s_barrier")
k.stamp("kbar1")
k.ds("ds_read_b128 v[24:27], v49", "ex")
k.ds("ds_read_b128 v[28:31], v49 offset:1024", "ex")
if PAAT == 1: bg.finish_issue(); poll_issue(PA, (0,1), "A")
idle(100)
k.dswait("ex")
k.mode = "valu"; k.every = opt("ft", 3)
k(f"""
v_pk_add_f32 v[16:17], v[64:65], v[24:25]
v_pk_add_f32 v[18:19], v[66:67], v[26:27]
v_pk_add_f32 v[20:21], v[68:69], v[28:29]
v_pk_add_f32 v[22:23], v[70:71], v[30:31]
v_cvt_pk_bf16_f32 v24, v16, v17
v_cvt_pk_bf16_f32 v25, v18, v19
v_cndmask_b32 v16, v20, v21, s[92:93]
v_cndmask_b32 v17, v22, v23, s[94:95]
v_cvt_pk_bf16_f32 v26, v20, v20
v_cvt_pk_bf16_f32 v27, v16, v21
v_cvt_pk_bf16_f32 v28, v22, v22
v_cvt_pk_bf16_f32 v29, v22, v22
v_cvt_pk_bf16_f32 v30, v17, v23
v_cvt_pk_bf16_f32 v31, v23, v23
""")
k.ds("ds_write_b64 v130, v[24:25]", "tw")
k.ds("ds_write_b64 v130, v[26:27] offset:1024", "tw")
k.ds("ds_write_b128 v131, v[28:31] offset:2048", "tw")
idle(80)
k.dswait("tw")
k("s_barrier")
k.stamp("kbar2")
D = 14
k.ds(f"ds_read_b64 v[16:17], v132 offset:{3*KCS}", "s2")
k.ds(f"ds_read_b128 v[18:21], v132 offset:{3*KCS+8}", "s2")
k.ds(f"ds_read_b128 v[22:25], v132 offset:{3*KCS+24}", "s2")
idle(100)
k.dswait("s2")
for i in range(8):
    k(f"v_alignbit_b32 v{28+i}, v{D+4+i}, v{D+3+i}, 16")
k.ds(f"ds_write_b128 v132, v[28:31] offset:{2*KCS+8}")
k.ds(f"ds_write_b128 v132, v[32:35] offset:{2*KCS+24}")
for i in range(8):
    k(f"v_alignbit_b32 v{44+i}, v{D+3+i}, v{D+2+i}, 16")
k.ds(f"ds_write_b128 v132, v[44:47] offset:{8}")
k.ds(f"ds_write_b128 v132, v[48:51] offset:{24}")
for i in range(4):
    k(f"v_pk_mov_b32 {vr(60+2*i,2)}, {vr(D+2+2*i,2)}, {vr(D+4+2*i,2)} op_sel:[1,0]")
k.ds(f"ds_write_b128 v132, v[60:63] offset:{KCS+8}")
k.ds(f"ds_write_b128 v132, v[64:67] offset:{KCS+24}")
idle(150)
k.mode = None
k.stamp("kdone")
poll_check(PA, (0,1), "A")
k.stamp("syncA")
bg.finish_issue()
poll_issue(PB_, (2,3), "B")
bg.cold_ok = True
with k.valu(opt("fl", 3)):
    ln_apply(PA, (0,1), 88)
k.dq.append("uw"); k.dq.pop(-2)
idle(80)
k.dswait("uw")
k("s_barrier")
k.stamp("ubarA")
ACC = 80
def cfr(buf, kind, idx):
    o = (0 if kind == "A" else 32) + 4*idx
    return vr(16+o, 4) if buf == 0 else ar(160+o, 4)
def conv_reads(rp, nfr):
    buf = rp & 1
    out = []
    for i in range(nfr):
        out.append((f"ds_read_b128 {cfr(buf,'A',i)}, v{CVA} offset:{512*i + 64*rp}", f"cA{rp}_{i}"))
        out.append((f"ds_read_b128 {cfr(buf,'B',i)}, v{CVB} offset:{512*(7-i) + 64*rp}", f"cB{rp}_{i}"))
    return out
def conv_half(hf, hooks={}):
    nfr = 4 if hf == 0 else 8
    pairs = [(a_, c_) for a_ in range(nfr) for c_ in range(nfr) if 4*hf <= a_ + c_ <= 4*hf + 3]
    pairs.sort(key=lambda p: (max(p), p[0]+p[1]))
    for ins, tg in conv_reads(0, nfr): k.ds(ins, tg)
    k.adv(60)
    first = set()
    for rp in range(4):
        if rp in hooks: hooks[rp]()
        nxt_ = conv_reads(rp+1, nfr) if rp < 3 else []
        for (a_, c_) in pairs:
            m = max(a_, c_)
            k.dswait(f"cB{rp}_{m}")
            n = a_ + c_ - 4*hf
            cc = vr(ACC+4*n,4) if n in first else "0"
            first.add(n)
            k(f"v_mfma_f32_16x16x32_bf16 {vr(ACC+4*n,4)}, {cfr(rp&1,'A',c_)}, {cfr(rp&1,'B',a_)}, {cc}")
            if nxt_:
                ins, tg = nxt_.pop(0); k.ds(ins, tg)
            k.slack(maxD=opt("cmaxd", 1))
        for ins, tg in nxt_: k.ds(ins, tg)
def epi_pre(hf):
    bg.hi.append(("D", lambda: k.ds(f"ds_read_b128 v[64:67], v{UR} offset:{(1-hf)*2048}", "ux")))
    bg.hi.append(("D", lambda: k.ds(f"ds_read_b128 v[68:71], v{XR} offset:{hf*2048}", "ux")))
    t0 = []
    bg.hi.append(("A", lambda: t0.append(k.t)))
    bg.hi.append(("W", lambda: k.dswait("ux"), lambda: t0[0] + 120))
    ls = []
    for i in range(4):
        ls += unp(72, 67-i) + [f"v_mul_f32 v72, v72, v{DSK}", f"v_mul_f32 v73, v73, v{DSK}", f"v_cvt_pk_bf16_f32 v74, v73, v72"] + unp(16+2*i, 74) + unp(24+2*i, 68+i)
    hiA(ls)
def conv_epi1(hf):
    bg.drain_hi()
    k("s_nop 7")
    for n in range(4):
        k.ds(f"ds_write_b128 v{PW}, {vr(ACC+4*n,4)} offset:{hf*CPH + 1024*n}", "cw")
def conv_epi2(hf):
    k.ds(f"ds_read_b128 v[48:51], v{PR} offset:{hf*CPH}", "pp")
    k.ds(f"ds_read_b128 v[56:59], v{PR} offset:{hf*CPH+4096}", "pp")
    k.ds(f"ds_read_b128 v[52:55], v{PR} offset:{hf*CPH+16}", "pp")
    k.ds(f"ds_read_b128 v[60:63], v{PR} offset:{hf*CPH+4096+16}", "pp")
    idle(120)
    k.dswait("pp")
    for i in range(4):
        k(f"v_pk_add_f32 {vr(48+2*i,2)}, {vr(48+2*i,2)}, {vr(56+2*i,2)}")
        k(f"v_pk_add_f32 {vr(48+2*i,2)}, {vr(48+2*i,2)}, {vr(16+2*i,2)}")
        k(f"v_cvt_pk_bf16_f32 v74, v{48+2*i}, v{49+2*i}")
        unpack(72, 74)
        k(f"v_pk_add_f32 v[72:73], v[72:73], {vr(24+2*i,2)}")
        k(f"v_cvt_pk_bf16_f32 v{76+i}, v72, v73")
    k.vm(f"buffer_store_dwordx4 v[76:79], v{VHT}, {srd(SWS)}, s{HST+hf} offen sc1", f"hst{hf}")
def h_setup():
    ls = [f"s_lshr_b32 s79, s{WV}, 1", f"s_xor_b32 s81, s{RG2}, s79", "s_lshl_b32 s81, s81, 15", f"s_add_u32 s81, s81, {HT}",
          f"s_and_b32 s83, s{WV}, 1", f"s_add_u32 s83, s83, s{ROT1}"]
    for c in range(4):
        ls += [f"s_add_u32 s78, s83, {2*c}", "s_and_b32 s78, s78, 7", "s_lshl_b32 s78, s78, 12", f"s_add_u32 s{92+c}, s78, s81"]
    return ls
def h_first(hf, c):
    if hf == 0:
        k(f"s_mov_b32 m0, s{RING+c}\ns_mov_b32 s101, s{92+c}")
    else:
        k(f"s_or_b32 m0, s{RING+c}, {RB}\ns_add_u32 s101, s{92+c}, 0x100000")
def h_ins(i): return f"buffer_load_dwordx4 v{L16}, {srd(SWS)}, s101 offen offset:{1024*i} sc1 lds"
LH = opt("lh", 1000)
def h_queue(hf):
    for c in range(4):
        for i in range(4):
            def f(c=c, i=i):
                if i == 0:
                    sn = ("R" if hf == 0 else "B") + str(c)
                    bg.free_slots([sn])
                    if sn in bg.lasttag: k.dswait(bg.lasttag[sn])
                    h_first(hf, c)
                k.vm(h_ins(i), f"h{hf}_{c}")
            sn_ = ("R" if hf == 0 else "B") + str(c)
            rdy = (lambda sn_=sn_: bg.busy.get(sn_, 0) is not None and k.t >= bg.busy.get(sn_, 0)) if i == 0 else None
            bg.hv.append((f, LH if c == 0 else LHIT, 150 if c == 0 else 76, i < 3, rdy))
hiA(h_setup())
conv_half(0, {3: lambda: epi_pre(0)})
k.stamp("conv0")
conv_epi1(0)
poll_check(PB_, (2,3), "B")
k.stamp("syncB")
with k.valu(opt("fl", 3)):
    ln_apply(PB_, (2,3), 88)
k.dq.append("uw"); k.dq.pop(-2)
idle(80)
k.dswait("uw")
k("s_barrier")
with k.valu(opt("fe", 4)):
    conv_epi2(0)
k(f"""
s_or_b32 s78, s2, s{WV}
s_cmp_lg_u32 s78, 0
s_cbranch_scc0 Lep
""")
k.label("Lep_ret")
def ep_stub():
    k.label("Lep")
    k(f"""
    v_mov_b32 v72, s{TAG}
    v_mov_b32 v73, {EP}
    buffer_store_dword v72, v73, {srd(SWS)}, 0 offen
    s_branch Lep_ret
    """)
stubs.append(ep_stub)
k.stamp("cepi0")
G1A, BF, SA, SEL, HCK, SV, HV = 16, 48, 72, 96, 100, 14, 76
def hk2():
    pass
def hk3():
    bg.need(lambda g: g[0] == 1)
    bg.avail = []
    h_queue(0)
    epi_pre(1)
    hiA(f"""s_mov_b32 s91, 0
s_mov_b32 s70, 0xffff0000
s_mov_b32 s71, 0xffff0000
v_lshrrev_b32 v{SEL}, 4, v{LANE}
v_xor_b32 v{SEL}, v{SEL}, v{LANE}
v_and_b32 v{SEL}, 1, v{SEL}
v_add_u32 v{SEL}, -1, v{SEL}
v_and_b32 v{SEL}, s{ONES}, v{SEL}
v_mov_b32 v{SEL+1}, v{SEL}
v_mov_b32 v{SEL+2}, v{SEL}
v_mov_b32 v{SEL+3}, v{SEL}
v_add_u32 v{HCK}, s{RING}, v{L16}
v_lshlrev_b32 v102, 3, v{LANE}
v_add_u32 v102, {G1X}, v102
s_lshl_b32 s78, s{WV}, 9
v_add_u32 v101, s78, v102""".split("\n"))
conv_half(1, {3: hk3})
k.stamp("conv1")
conv_epi1(1)
bg.hiagpr_ok = True
idle(120)
k.dswait("cw")
k("s_barrier")
with k.valu(opt("fe", 4)):
    conv_epi2(1)
bg.finish_cs()
k.stamp("cepi1")
def g2reg(pos):
    return vr(108+4*pos, 4) if pos < 8 else w1reg(pos-8)
def g2r0(pos):
    return 108+4*pos if pos < 8 else 160+4*(pos-8)
def h1_table():
    ls = [f"s_mul_i32 s84, s{RG2}, 114688", f"s_mul_i32 s78, s{WV}, {28*1024}", "s_add_u32 s84, s84, s78", f"s_add_u32 s84, s84, {H1F}",
          f"s_lshl_b32 s78, s{ROT2}, 12", "s_add_u32 s16, s78, s84", f"s_add_u32 s85, s84, {7*4096}"]
    for g4 in range(1, 7):
        ls.append(f"s_add_u32 s{16+g4}, s{15+g4}, 4096\ns_cmp_ge_u32 s{16+g4}, s85\ns_cselect_b32 s{16+g4}, s84, s{16+g4}")
    return ls
def ftab(b): return 16 + b if b < 7 else 52 + (b - 7) if b < 11 else 64 + (b - 11)
def f_ins(b, i):
    return f"buffer_load_dwordx4 {g2reg(4*(b%7)+i)}, v{L16}, {srd(SWS)}, s{ftab(b)} offen offset:{1024*i} sc1"
def f_queue(b, rdy=None):
    for i in range(4):
        bg.hv.append((lambda i=i: k.vm(f_ins(b, i), f"f{b}"), LH if b % 7 == 0 else LHIT, 230 if b % 7 == 0 else 76, False, rdy))
def hchk_reads(c): return [f"ds_read_b128 {vr(HV+4*i,4)}, v{HCK} offset:{c*4096+i*1024}" for i in range(4)]
def hchk_alu():
    ls = [f"v_max3_u32 v{HV}, v{HV}, v{HV+1}, v{HV+2}"]
    for i in range(3, 15, 2): ls.append(f"v_max3_u32 v{HV}, v{HV}, v{HV+i}, v{HV+i+1}")
    ls += [f"v_max_u32 v{HV}, v{HV}, v{HV+15}", f"v_cmp_eq_u32 vcc, -1, v{HV}"]
    return ls
def hchk_branch(hf, c):
    L = f"Lhs_{hf}_{c}"
    k(f"s_cbranch_vccnz {L}")
    k.label(f"{L}_ret")
    def stub():
        k.label(L)
        k(f"s_mov_b32 s83, m0\ns_mov_b32 s81, s101")
        k.label(f"{L}_l")
        k(f"s_add_u32 s91, s91, 1\ns_cmp_ge_u32 s91, {SPIN}\ns_cbranch_scc1 {L}_x")
        h_first(hf, c)
        for i in range(4): k(h_ins(i))
        k("s_waitcnt vmcnt(0)")
        for l in hchk_reads(c): k(l)
        k("s_waitcnt lgkmcnt(0)")
        for l in hchk_alu(): k(l)
        k(f"s_cbranch_vccnz {L}_l")
        k.label(f"{L}_x")
        k(f"s_mov_b32 m0, s83\ns_mov_b32 s101, s81\ns_branch {L}_ret")
    stubs.append(stub)
def g1(hf, hooks):
    def rd_ins(n, tb):
        c, i = n // 8, n % 8
        for rd in range(2):
            k.ds(f"ds_read_b64_tr_b16 {vr(BF+8*(n%3)+4*tb+2*rd,2)}, v{AX+(i>>1)} offset:{tb*32768 + c*4096 + (i&1)*1024 + rd*512}", f"b{n}")
    bg.force_hv(f"h{hf}_0")
    k.vmwait(f"h{hf}_0")
    for l in hchk_reads(0): k.ds(l, "hv")
    k.adv(120)
    k.dswait("hv")
    for l in hchk_alu(): k(l)
    hchk_branch(hf, 0)
    k("s_barrier")
    k.stamp(f"g1w{hf}")
    for n in range(2):
        for tb in range(2): rd_ins(n, tb)
    k.adv(100)
    alu = []
    for n in range(32):
        if n in hooks: hooks[n]()
        k.dswait(f"b{n}")
        c1 = n//8 + 1; i = n % 8
        for tb in range(2):
            cc = "0" if n == 0 else vr(G1A+16*tb,16)
            k(f"v_mfma_f32_32x32x16_bf16 {vr(G1A+16*tb,16)}, {w1reg(n)}, {vr(BF+8*(n%3)+4*tb,4)}, {cc}")
            if tb == 0 and i == 6 and n < 24:
                if n == 22:
                    bg.free_slots(["C1"])
                    if "C1" in bg.lasttag: k.dswait(bg.lasttag["C1"])
                k("s_barrier"); k.t -= 32
            if n + 2 < 32: rd_ins(n+2, tb)
            if n < 24 and i in (1, 2):
                if i == 1 and tb == 0:
                    bg.force_hv(f"h{hf}_{c1}")
                    k.vmwait(f"h{hf}_{c1}")
                k.ds(hchk_reads(c1)[2*(i-1)+tb], "hv")
            elif n < 24 and i in (4, 5):
                if i == 4 and tb == 0: k.dswait("hv"); alu = hchk_alu()
                for l in alu[:3]: k(l)
                alu = alu[3:]
                if i == 5 and tb == 1: hchk_branch(hf, c1)
            elif n == 27 and tb == 0:
                k(f"v_cndmask_b32 v104, v{SA}, v{SA+1}, s[70:71]")
                k(f"v_cndmask_b32 v105, v92, v93, s[70:71]")
                k.ds(f"ds_write_b64 v101, v[104:105]", "sx")
            elif n == 28 and tb == 1:
                k.dswait("sx")
                k("s_barrier"); k.t -= 32
            elif n == 29:
                for j in range(2):
                    k.ds(f"ds_read_b64 {vr(76+4*tb+2*j,2)}, v102 offset:{512*(2*tb+j)}", "sr")
            elif n == 31 and tb == 0:
                k.dswait("sr")
                k("v_add_f32 v76, v76, v78\nv_add_f32 v80, v80, v82\nv_add_f32 v77, v77, v79\nv_add_f32 v81, v81, v83")
            elif n == 31 and tb == 1:
                k(f"v_add_f32 v{SV+hf}, v76, v80\nv_add_f32 v77, v77, v81")
                k(f"v_mul_f32 v76, 0x3b000000, v{SV+hf}\nv_mul_f32 v77, 0x3b000000, v77")
                k("v_cvt_pk_bf16_f32 v78, v76, v77")
                unpack(76, 78)
            k.slack()
            if i < 2:
                sa = SA if tb == 0 else 92
                cc = "0" if n == 0 else vr(sa,4)
                k(f"v_mfma_f32_16x16x32_bf16 {vr(sa,4)}, {vr(SEL,4)}, {vr(BF+8*(n%3)+4*tb,4)}, {cc}")
def g1_epi(hf):
    k("s_nop 3")
    for tb in range(2):
        sb = H1B if tb == 0 else HB1
        if hf:
            k(f"s_add_u32 s79, s{sb}, {32*114688}"); sb = 79
        for fr in range(2):
            O = 80 + 4*fr + 8*tb
            for d in range(4):
                r = G1A + 16*tb + 8*fr + 2*d
                k(f"v_pk_fma_f32 {vr(r,2)}, v[76:77], {vr(CS+8*fr+2*d,2)}, {vr(r,2)} op_sel:[{tb},0,0] op_sel_hi:[{tb},1,1] neg_lo:[1,0,0] neg_hi:[1,0,0]")
                k(f"v_cvt_pk_bf16_f32 v{O+d}, v{r}, v{r+1}")
                k(f"v_pk_max_i16 v{O+d}, v{O+d}, 0")
                k(f"v_or_b32 v{O+d}, v{O+d}, v{SG}")
            k.vm(f"buffer_store_dwordx4 {vr(O,4)}, v{L16}, {srd(SH1)}, s{sb} offen offset:{1024*fr} sc1", f"h1st{hf}")
def setav(l):
    def f(): bg.avail = l
    return f
H1AT = opt("h1at", 12)
def hk_h1(): bg.avail = ["C0"]; h_queue(1); hiA(h1_table())
g1(0, {0: setav(["C1", "B2", "B3", "C0"]), H1AT: hk_h1})
k.stamp("g1_0")
with k.valu(opt("fe", 4)):
    g1_epi(0)
    for i in range(4):
        k(f"v_add_u32 v{AX+i}, {RB}, v{AX+i}")
    k(f"v_add_u32 v{HCK}, {RB}, v{HCK}")
k.stamp("g1e0")
FAT = opt("fat", 20)
def wdone(g): return lambda: bg.ii > 8 + g
def hk_f(): f_queue(0, wdone(opt("wa", 5))); f_queue(1, wdone(opt("wa", 5)+2))
g1(1, {0: setav(["U0", "U1", "C0", "C1"]), 13: setav(["U0", "U1", "C0"]), FAT: hk_f})
k.stamp("g1_1")
f_queue(2, wdone(min(13, opt("wa", 5)+4)))
with k.valu(opt("fe", 4)):
    g1_epi(1)
bg.drain_hi()
k.note(91, 61)
k.stamp("g1e1")
k.mode = "valu"; k.every = 2
G2A = 16
k(f"""
s_lshl_b32 s78, s{WV}, 13
v_add_u32 v48, s78, v{LP}
v_add_u32 v49, {RB}, v48
""")
for hf in range(2):
    for u in range(8):
        for rd in range(2):
            k.ds(f"ds_read_b64_tr_b16 {vr(16+4*u+2*rd if hf == 0 else 52+4*u+2*rd,2)}, v{48+hf} offset:{u*1024+rd*512}", f"q{hf}")
k(f"""
v_and_b32 v96, 31, v{LANE}
v_lshlrev_b32 v97, 5, v96
v_lshrrev_b32 v98, 5, v{LANE}
v_lshl_add_u32 v97, v98, 2, v97
s_lshl_b32 s79, s{WV}, 3
s_add_u32 s79, s79, {QX}
v_add_u32 v97, s79, v97
v_lshlrev_b32 v96, 2, v96
v_add_u32 v96, {SXX}, v96
v_add_u32 v4, s78, v{L16}
""")
for hf in range(2):
    k.dswait(f"q{hf}")
    B = 16 if hf == 0 else 52
    for u in range(32):
        c = "0" if u < 2 else f"v{100+2*hf+(u&1)}"
        k(f"v_dot2_f32_bf16 v{100+2*hf+(u&1)}, v{B+u}, v{B+u}, {c}")
k(f"""
s_and_b32 s78, s{WV}, 1
s_lshr_b32 s79, s{WV}, 1
v_and_b32 v50, 15, v{LANE}
v_add_f32 v100, v100, v101
v_add_f32 v102, v102, v103
""")
k.ds(f"ds_write_b32 v97, v100")
k.ds(f"ds_write_b32 v97, v102 offset:1024")
k.ds(f"ds_write_b32 v96, v{SV}")
k.ds(f"ds_write_b32 v96, v{SV+1} offset:128", "qw")
k(f"""
s_lshl_b32 s81, s78, 4
v_add_u32 v50, s81, v50
v_lshrrev_b32 v51, 4, v{LANE}
s_lshl_b32 s81, s79, 2
v_add_u32 v51, s81, v51
v_lshlrev_b32 v5, 10, v51
v_lshl_add_u32 v5, v50, 4, v5
v_add_u32 v6, {RB}, v5
v_lshlrev_b32 v7, 10, v50
v_lshl_add_u32 v7, v51, 4, v7
v_lshlrev_b32 v104, 5, v50
v_add_u32 v104, {QX}, v104
v_lshlrev_b32 v105, 2, v50
v_add_u32 v105, {SXX}, v105
s_sub_u32 s81, s{DT}, s{ROT1}
s_and_b32 s83, s81, 1
s_lshl_b32 s83, s83, 14
s_bfe_u32 s81, s81, 0x20001
s_lshl_b32 s81, s81, 12
s_add_u32 s81, s81, s83
s_lshl_b32 s83, s78, 5
s_add_u32 s81, s81, s83
v_and_b32 v106, 0xd8, v{LP}
v_lshl_add_u32 v106, v51, 9, v106
v_add_u32 v106, s81, v106
v_add_u32 v107, {RB}, v106
v_add_u32 v13, {RB}, v4
s_lshl_b32 s98, s{RG2}, 15
s_lshl_b32 s79, s{DT}, 7
s_add_u32 s98, s98, s79
s_add_u32 s99, s98, 0x100000
s_mov_b32 s97, 0
s_mov_b32 s96, 0x80008000
""")
for g4 in range(7): k(f"s_add_u32 s{ftab(7+g4)}, s{16+g4}, {32*114688}")
k.mode = None
k.dswait("qw")
k("s_barrier")
k.stamp("g2start")
def hiD(ins, tag): bg.hi.append(("D", lambda: k.ds(ins, tag)))
def hiW(tag, lat=150):
    t0 = []
    bg.hi.append(("A", lambda: t0.append(k.t)))
    bg.hi.append(("W", lambda: k.dswait(tag), lambda: t0[0] + lat))
def r_queue():
    for ins in ("ds_read_b128 v[52:55], v104", "ds_read_b128 v[56:59], v104 offset:16", "ds_read_b128 v[60:63], v104 offset:1024", "ds_read_b128 v[64:67], v104 offset:1040",
                "ds_read_b32 v68, v105", "ds_read_b32 v69, v105 offset:128"): hiD(ins, "qr")
    hiW("qr")
    lines = []
    for hf in range(2):
        B = 52 + 8*hf
        for i in range(4): lines.append(f"v_add_f32 v{B+i}, v{B+i}, v{B+4+i}")
        lines += [f"v_add_f32 v{B}, v{B}, v{B+1}", f"v_add_f32 v{B+2}, v{B+2}, v{B+3}", f"v_add_f32 v{70+hf}, v{B}, v{B+2}"]
    for hf in range(2):
        lines += [f"v_mul_f32 v{68+hf}, 0x3b000000, v{68+hf}", f"v_mul_f32 v{70+hf}, 0x3b000000, v{70+hf}", f"v_fma_f32 v{70+hf}, -v{68+hf}, v{68+hf}, v{70+hf}"]
    lines += ["v_cvt_pk_bf16_f32 v72, v70, v71", "v_pk_max_i16 v72, v72, 0"] + unp(70, 72) + \
             ["v_add_f32 v70, 0x3727c5ac, v70", "v_add_f32 v71, 0x3727c5ac, v71", "v_cvt_pk_bf16_f32 v72, v70, v71"] + unp(70, 72) + \
             ["v_sqrt_f32 v70, v70", "v_sqrt_f32 v71, v71\ns_nop 0", "v_cvt_pk_bf16_f32 v72, v70, v71", f"v_or_b32 v72, v72, v{SG}"] + unp(70, 72) + \
             ["v_rcp_f32 v48, v70", "v_rcp_f32 v49, v71\ns_nop 0"]
    hiA(lines)
def fin_queue(hf, packed):
    P = 52
    for w in range(4):
        for g in range(2):
            hiD(f"ds_read_b128 {vr(P+8*w+4*g,4)}, v{5+hf} offset:{32768 + w*8192 + g*512}", "fp")
    for rd_ in range(2):
        hiD(f"ds_read_b64_tr_b16 {vr(84+2*rd_,2)}, v{106+hf} offset:{rd_*256}", "fp")
    hiW("fp")
    lines = []
    for i in range(4):
        a_ = P + 2*i
        if packed:
            lines += [f"v_pk_add_f32 {vr(a_,2)}, {vr(a_,2)}, {vr(a_+8,2)}", f"v_pk_add_f32 {vr(a_+16,2)}, {vr(a_+16,2)}, {vr(a_+24,2)}",
                      f"v_pk_add_f32 {vr(a_,2)}, {vr(a_,2)}, {vr(a_+16,2)}", f"v_pk_mul_f32 {vr(a_,2)}, {vr(a_,2)}, v[48:49] op_sel:[0,{hf}] op_sel_hi:[1,{hf}]"]
        else:
            for e in range(2):
                lines += [f"v_add_f32 v{a_+e}, v{a_+e}, v{a_+8+e}", f"v_add_f32 v{a_+16+e}, v{a_+16+e}, v{a_+24+e}",
                          f"v_add_f32 v{a_+e}, v{a_+e}, v{a_+16+e}", f"v_mul_f32 v{a_+e}, v{a_+e}, v{48+hf}"]
        lines += [f"v_cvt_pk_bf16_f32 v88, v{a_}, v{a_+1}"] + unp(a_, 88) + unp(a_+8, 84+i)
        if packed:
            lines += [f"v_pk_add_f32 {vr(a_,2)}, {vr(a_,2)}, {vr(a_+8,2)}"]
        else:
            lines += [f"v_add_f32 v{a_}, v{a_}, v{a_+8}", f"v_add_f32 v{a_+1}, v{a_+1}, v{a_+9}"]
        lines += [f"v_cvt_pk_bf16_f32 v{92+i}, v{a_}, v{a_+1}"]
    hiA(lines)
    bg.hi.append(("A", lambda: k.vm(f"buffer_store_dwordx4 v[92:95], v7, {srd(SOUT)}, s{98+hf} offen", "out")))
CK = 100
def chk_lines(b):
    r = [g2r0(4*(b%7)+i) for i in range(4)]
    regs = [x+d for x in r for d in range(4)]
    ls = [f"v_xor_b32 v{CK}, v{regs[0]}, v{SG}"]
    for x in regs[1:]:
        ls.append(f"v_bitop3_b32 v{CK}, v{CK}, v{x}, v{SG} bitop3:0xf6")
    ls.append(f"v_and_b32 v{CK}, s96, v{CK}")
    ls.append(f"v_cmp_ne_u32 vcc, 0, v{CK}")
    return ls
def chk_branch(b, upto):
    L = f"Lfs_{b}"
    k(f"s_cbranch_vccnz {L}")
    k.label(f"{L}_ret")
    def stub():
        k.label(L)
        k(f"s_add_u32 s97, s97, 1\ns_cmp_ge_u32 s97, {SPIN}\ns_cbranch_scc1 {L}_ret")
        for bb in range(b, upto+1):
            for i in range(4): k(f_ins(bb, i))
        k("s_waitcnt vmcnt(0)")
        for l in chk_lines(b): k(l)
        k(f"s_cbranch_vccnz {L}\ns_branch {L}_ret")
    stubs.append(stub)
for b_ in range(3): bg.force_hv(f"f{b_}")
k.vmwait("f0")
for l in chk_lines(0): k(l)
chk_branch(0, 2)
k.stamp("g2f0")
r_queue()
for b in range(14):
    hf = b // 7
    ck = chk_lines(b+1) if b + 1 < 14 else []
    if b == 8:
        bg.drain_hi()
        k.dswait("pw0")
        k("s_barrier")
        fin_queue(0, False)
    if b < 7:
        bg.need(lambda g: g[0] == 1 or g[1] <= 2*b+1)
        k.dswait(f"r{8+2*b+1}")
    if b + 3 < 14: f_queue(b+3, wdone(min(13, 2*(b+3)+opt("wa", 5))))
    for m in range(8):
        pos = 4*(b%7) + m//2; t = m & 1
        cc = "0" if pos == 0 else vr(G2A+16*t,16)
        k(f"v_mfma_f32_32x32x16_bf16 {vr(G2A+16*t,16)}, {ar(8*pos+4*t,4)}, {g2reg(pos)}, {cc}")
        if ck and m >= 3:
            if m == 3: bg.force_hv(f"f{b+1}"); k.vmwait(f"f{b+1}")
            for l in ck[(m-3)*4:(m-3)*4+4]: k(l)
            if m == 7: chk_branch(b+1, min(b+3, 13))
        k.slack()
    if b % 7 == 6:
        k("s_nop 7\ns_nop 3")
        for j in range(8):
            k.ds(f"ds_write_b128 v{4 if hf == 0 else 13}, {vr(G2A+4*j,4)} offset:{32768 + j*1024}", f"pw{hf}")
        k.stamp(f"g2_{hf}")
bg.drain_hi()
k.note(97, 60)
k.dswait()
k("s_barrier")
k.stamp("g2bar")
fin_queue(1, True); bg.drain_hi()
print("model t from pub:", k.t - T_PUB); print(" ".join(x.split("@")[0] + "@" + str(int(x.split("@")[1]) - T_PUB) for x in bg.log))
finish()
```

```python
import sys, struct
from kb2 import *
DIAG = "diag" in sys.argv
OUT = [x for x in sys.argv[1:] if x.endswith(".s")][0]
def opt(name, default):
    for a in sys.argv:
        if a.startswith(name + "="): return int(a.split("=")[1])
    return default
def f2h(x): return hex(struct.unpack('<I', struct.pack('<f', float(x)))[0])

XT, HT, H1F, ST, CF, EP, STAMPS = 0x0, 0x400000, 0x600000, 0xD00000, 0xD08000, 0xD10000, 0xE00000
RA, RB, RC = 0, 65536, 131072
KC = RB; KCS = 4160; KCH = 4*KCS
UC = RB + 2*KCH; UCS = 4640; UCH = 2*UCS
XC = UC + 2*UCH
assert XC + 8192 <= RC
SCR = RC; SCW = 4352; SCH = 2176
EX = RC + 4*SCW
STG = EX + 8192
CP = RC; CPH = 16384
G1X = RC + 16384
QX = RC + 24576; SXX = QX + 2048
SPIN = 200000

k = K2(DIAG); k.VSTAMP = 143
TID, L16, VHT, LP, AX, W2V, LANE, RD2, CVA, CVB = 0, 1, 2, 3, 4, 8, 12, 13, 14, 15
RD0, T16, VU, VXC, PW, PR, XR, UR, DSK, ONE, W1V = 108, 110, 111, 112, 113, 114, 115, 116, 118, 120, 124
RDC, RDU, SG = 140, 141, 142
CS = 144
def w1reg(n, off=0, cnt=4):
    return vr(160+4*n+off, cnt) if n < 24 else ar(224+4*(n-24)+off, cnt)
WV = 3
SWS, SW1, SW2, SOUT, SH1 = 44, 52, 56, 60, 64
SLC = 48
TAG = 68
RG, FT, RG2, DT, ROT1, ROT2 = 72, 73, 74, 75, 76, 77
MASK, ONES = 80, 82
HST, H1B, RBK, HB1 = 86, 88, 89, 90
TW1, TW2, RING = 16, 24, 38
def srd(r): return f"s[{r}:{r+3}]"

def cmul_a(d, x, y, negim=False):
    return f"v_pk_mul_f32 {vr(d,2)}, {vr(x,2)}, {vr(y,2)} op_sel:[0,0] op_sel_hi:[1,0]" + (" neg_hi:[1,0]" if negim else "")
def cmul_b(d, x, y, conj=False, negim=False):
    m = "neg_lo:[1,0,0] neg_hi:[1,0,0]" if negim else ("neg_hi:[1,0,0]" if conj else "neg_lo:[1,0,0]")
    return f"v_pk_fma_f32 {vr(d,2)}, {vr(x,2)}, {vr(y,2)}, {vr(d,2)} op_sel:[1,1,0] op_sel_hi:[0,1,1] {m}"
def cmul(d, x, y, conj=False, negim=False):
    k(cmul_a(d, x, y, negim)); k(cmul_b(d, x, y, conj, negim))
def cmulN(lst, conj=False):
    for (d, x, y) in lst: k(cmul_a(d, x, y))
    for (d, x, y) in lst: k(cmul_b(d, x, y, conj))
def unp(d, s):
    return [f"v_and_b32 v{d+1}, s{MASK}, v{s}", f"v_lshlrev_b32 v{d}, 16, v{s}"]
def unpack(d, s):
    for l in unp(d, s): k(l)

LHIT, LCOLD, CAP = opt("lhit", 500), opt("lcold", 1000), opt("cap", 9)
SLOT = {f"R{i}": (RING+i, RD2, i*4096) for i in range(4)}
SLOT.update({f"B{i}": (-(RING+i), 117, i*4096) for i in range(4)})
SLOT.update({"C0": (SLC, RDC, 0), "C1": (SLC+1, RDC, 16384), "U0": (SLC+2, RDU, 0), "U1": (SLC+3, RDU, 4096)})
ORD = [x.split("=")[1] for x in sys.argv if x.startswith("ord=")]
ORD = ORD[0] if ORD else "ABCDEFGHabcdefghijklmn"
class BG:
    def __init__(s):
        s.G = [((1, ord(c)-65) if c.isupper() else (2, ord(c)-97)) for c in ORD]
        assert len(s.G) == 22
        s.cold = {(1,0),(1,1),(2,0),(2,1),(2,2),(2,3)}
        s.ii = 0; s.isub = 0; s.ci = 0; s.csub = 0
        s.slot = {}; s.land = {}
        s.avail = []
        s.busy = {}
        s.lasttag = {}
        s.hi = []; s.hv = []; s.hilock = False
        s.issue_ok = True; s.hiagpr_ok = False; s.cold_ok = True
        s.csn = 0; s.rdone = {}
        s.log = []; s.seen = set()
    def canV(s): return k.t - k.lastV >= k.VSP and k.inflight() < CAP
    def _dma(s):
        kind, g = s.G[s.ii]; i = s.isub
        if kind == 1: k.vm(f"buffer_load_dwordx4 v{W1V+i}, {srd(SW1)}, s{TW1+g} offen offset:{1024*i} lds", f"w{s.ii}")
        else: k.vm(f"buffer_load_dwordx4 v{W2V+i}, {srd(SW2)}, s{TW2+g} offen offset:{1024*i} lds", f"w{s.ii}")
        s.land[s.ii] = k.model_load(LCOLD, opt('scold', 230)) if (kind, g) in s.cold else k.model_load(LHIT)
        s.isub += 1
        if s.isub == 4: s.isub = 0; s.ii += 1
    def _free(s, force=False):
        for n in s.avail:
            b = s.busy.get(n, -1000)
            if b is not None and (force or k.t >= b): return n
        return None
    def _start(s, n):
        if n in s.lasttag: k.dswait(s.lasttag[n])
        k(f"s_mov_b32 m0, s{SLOT[n][0]}" if SLOT[n][0] > 0 else f"s_or_b32 m0, s{-SLOT[n][0]}, {RB}")
        s.slot[s.ii] = n; s.busy[n] = None
        s.log.append(f"I{ORD[s.ii]}:{n}@{k.t}")
        s._dma()
    def _read(s):
        n = s.ci; kind, g = s.G[n]; j = s.csub; sl = s.slot[n]; _, areg, off = SLOT[sl]
        if j == 0:
            k.vmwait(f"w{n}"); k.t = max(k.t, s.land[n]); s.log.append(f"C{ORD[n]}@{k.t}")
        if kind == 1:
            assert sl[0] == "R"
            i, rd = j >> 1, j & 1
            k.ds(f"ds_read_b64_tr_b16 {w1reg(4*g+i, 2*rd, 2)}, v{RD0+(i>>1)} offset:{off + (i&1)*1024 + rd*512}", f"r{n}")
        else:
            kk, t, rd = j >> 2, (j >> 1) & 1, j & 1
            k.ds(f"ds_read_b64_tr_b16 {ar(8*(2*g+kk)+4*t+2*rd,2)}, v{areg} offset:{off + (2*kk+rd)*1024 + t*512}", f"r{n}")
        s.csub += 1
        if s.csub == 8:
            s.csub = 0; s.ci += 1; s.busy[sl] = k.t + 150; s.lasttag[sl] = f"r{n}"
            if kind == 1: s.rdone[g] = (k.t + 150, f"r{n}")
    def _cs(s):
        g, i = s.csn >> 2, s.csn & 3
        if i == 0: k.dswait(s.rdone[g][1])
        c = "0" if s.csn == 0 else vr(CS,16)
        k(f"v_mfma_f32_32x32x16_bf16 {vr(CS,16)}, {w1reg(s.csn)}, {vr(ONE,4)}, {c}")
        s.csn += 1
    def _hi(s):
        it = s.hi.pop(0); it[1]()
    def consumable(s):
        if s.ci >= s.ii: return False
        kind, g = s.G[s.ci]
        return not (kind == 2 and g >= 10 and not s.hiagpr_ok)
    def vstep(s):
        if not s.canV(): return False
        if s.isub: s._dma(); return True
        if s.hv:
            it = s.hv[0]
            if it[4] is None or it[4](): s._hv(); return True
            if s.hilock: return False
        if s.issue_ok and not s.hilock and s.ii < len(s.G):
            n = s._free()
            if n and not (s.G[s.ii][0] == 1 and n[0] != "R") and (s.cold_ok or s.G[s.ii] not in s.cold): s._start(n); return True
        return False
    def _hv(s):
        it = s.hv.pop(0); it[0](); k.model_load(it[1], it[2]); s.hilock = it[3]
    def step(s, valu, maxD=3):
        if s.vstep(): return True
        if s.consumable() and (s.csub or k.t >= s.land[s.ci]) and (valu or k.gapD < maxD) and s._free(True) is None:
            s._read(); return True
        if s.hi:
            ty = s.hi[0][0]
            if ty == "A" or (ty == "D" and (valu or k.gapD < maxD)): s._hi(); return True
            if ty == "W" and k.t >= s.hi[0][2](): s._hi(); return True
        if valu and s.csn < 32 and k.t >= k.pipe and (s.csn >> 2) in s.rdone and k.t >= s.rdone[s.csn >> 2][0]:
            s._cs(); return True
        if s.consumable() and (s.csub or k.t >= s.land[s.ci]) and (valu or k.gapD < maxD):
            s._read(); return True
        return False
    def _forced(s, fn):
        old = k.infill; k.infill = True; fn(); k.infill = old
    def finish_issue(s):
        def f():
            pass
        s._forced(f)
    def issue_now(s, cnt):
        def f():
            for _ in range(cnt):
                s._start(s._free(True))
                while s.isub: s._dma()
        s._forced(f)
    def drain_hi(s):
        def f():
            while s.hi:
                s.vstep(); s._hi()
        s._forced(f)
    def force_hv(s, tag, cnt=4):
        def f():
            while k.cntv.get(tag, 0) < cnt:
                while s.isub: s._dma()
                s._hv()
            s.seen.add(tag)
        s._forced(f)
    def free_slots(s, names):
        def f():
            while s.isub: s._dma()
            while any(s.busy.get(n, 0) is None for n in names): s._read()
        s._forced(f)
    def need(s, pred):
        def f():
            last = max(i for i, g in enumerate(s.G) if pred(g))
            while s.ci <= last:
                while s.hilock: s._hv()
                while s.isub: s._dma()
                n = s._free(True)
                if s.ii <= last and n: s._start(n)
                else: s._read()
        s._forced(f)
    def finish_cs(s):
        def f():
            while s.csn < 32: s._cs()
        s._forced(f)
bg = BG(); k.bg = bg
def hiA(lines):
    for l in lines: bg.hi.append(("A", lambda l=l: k(l)))

stubs = []
def finish():
    if DIAG:
        k.mode = None
        k("s_waitcnt vmcnt(0)")
        k.stamp("end")
        k("s_memrealtime s[92:93]")
        k.flush_stamps()
        k(f"v_writelane_b32 v{k.VSTAMP}, s14, 62")
        k(f"v_writelane_b32 v{k.VSTAMP}, s92, 63")
        k(f"s_lshl_b32 s78, s2, 10\ns_add_u32 s78, s78, {STAMPS}\nv_lshlrev_b32 v16, 2, v0")
        k(f"buffer_store_dword v{k.VSTAMP}, v16, {srd(SWS)}, s78 offen")
        open(OUT[:-2] + ".names", "w").write("\n".join(k.stampnames))
    k.label("Lend")
    k("s_endpgm")
    for st_ in stubs: st_()
    if opt("padk", 0):
        for _ in range(opt("padk", 0)*128): k("v_fma_f32 v1, v1, v1, v1")
        k("s_endpgm")
    k.label("Lcodeend")
    lines = align_pass(k.lines) if opt("align", 1) else k.lines
    open(OUT, "w").write(single_file("\n".join(lines) + "\n", 256, 256, 163840, 512, sgpr=102, accum=256))
    sys.exit(0)
STOP = [x.split("=")[1] for x in sys.argv if x.startswith("stop=")]
_st = k.stamp
def stamp2(name=""):
    _st(name)
    if STOP and name == STOP[0]: finish()
k.stamp = stamp2
k.label("Lstart")
k("""
s_load_dwordx16 s[16:31], s[0:1], 0
s_load_dwordx8 s[32:39], s[0:1], 64
s_load_dwordx2 s[40:41], s[0:1], 96
s_load_dwordx2 s[42:43], s[0:1], 112
s_getpc_b64 s[90:91]
s_cmp_ge_u32 s2, 256
s_cbranch_scc1 Lend
""")
if DIAG:
    k("s_memrealtime s[14:15]")
    k(f"v_mov_b32 v{k.VSTAMP}, 0")
k.stamp("start")
k(f"""
s_lshl_b32 s78, s2, 10
s_and_b32 s78, s78, 0x6000
v_lshrrev_b32 v51, 2, v0
v_lshl_add_u32 v139, v51, 7, s78
v_min_u32 v139, Lcodeend-Lstart-48, v139
""")
k.vm("global_load_dword v138, v139, s[90:91]", "code")
k(f"""
s_and_b32 s{RBK}, s2, 7
s_lshl_b32 s{RBK}, s{RBK}, 5
s_lshr_b32 s79, s2, 3
s_add_u32 s{RBK}, s{RBK}, s79
s_lshl_b32 s84, s{RBK}, 13
v_and_b32 v50, 1, v0
v_lshlrev_b32 v50, 12, v50
v_lshl_add_u32 v50, v51, 4, v50
v_add_u32 v50, s84, v50
v_and_b32 v{LANE}, 63, v0
v_lshlrev_b32 v{L16}, 4, v{LANE}
v_lshrrev_b32 v52, 6, v0
v_lshl_add_u32 v53, v52, 11, v{L16}
v_add_u32 v53, s84, v53
s_waitcnt lgkmcnt(0)
""")
for i in range(4):
    k.vm(f"global_load_dwordx4 {vr(24+4*i,4)}, v50, s[16:17] offset:{1024*i}", "xt")
for i in range(2):
    k.vm(f"global_load_dwordx4 {vr(16+4*i,4)}, v53, s[16:17] offset:{1024*i}", "xs")
k.stamp("karg")
k(f"""
s_mov_b32 s79, {EP}
s_load_dwordx2 s[{TAG}:{TAG+1}], s[42:43], s79
s_lshl_b32 s78, s2, 9
v_lshl_add_u32 v54, v0, 1, s78
""")
for i in range(6):
    k.vm(f"global_load_ushort v{40+i}, v54, s[{18+2*i}:{19+2*i}]", "par")
k(f"""
v_readfirstlane_b32 s{WV}, v52
s_lshr_b32 s{DT}, s2, 5
s_min_u32 s83, s{DT}, 6
s_and_b32 s{FT}, s2, 1
s_mul_i32 s{FT}, s{FT}, 7
s_add_u32 s{FT}, s{FT}, s83
s_bfe_u32 s81, s2, 0x20003
s_lshl_b32 s78, s2, 2
s_load_dword s70, s[30:31], s78
s_load_dword s71, s[32:33], s78
s_mul_i32 s78, s2, 7168
v_and_b32 v139, 127, v0
v_lshrrev_b32 v139, 1, v139
v_min_u32 v139, 55, v139
v_lshl_add_u32 v139, v139, 7, s78
s_cmp_lt_u32 s{WV}, 2
s_cselect_b32 s94, s36, s38
s_cselect_b32 s95, s37, s39
""")
if opt("pf1", 1): k.vm("global_load_dword v137, v139, s[94:95]", "pf1")
if opt("pfx", 0):
    k(f"""
    s_xor_b32 s78, s84, {128*8192}
    v_lshl_add_u32 v128, v51, 7, s78
    v_xor_b32 v135, {4*512}, v54
    """)
    k.vm("global_load_dword v137, v128, s[16:17]", "pfx")
    for i in range(6):
        k.vm(f"global_load_ushort v137, v135, s[{18+2*i}:{19+2*i}]", "pfx")
k.stamp("iss0")
k(f"""
s_mov_b32 s{SWS}, s42
s_mov_b32 s{SWS+1}, s43
s_mov_b32 s{SWS+2}, 0x10000000
s_mov_b32 s{SWS+3}, 0x20000
v_lshrrev_b32 v53, 3, v0
v_lshlrev_b32 v53, 15, v53
v_and_b32 v54, 7, v0
v_lshl_add_u32 v{VHT}, v54, 4, v53
v_mov_b32 v68, -1
v_mov_b32 v69, -1
v_mov_b32 v70, -1
v_mov_b32 v71, -1
s_lshl_b32 s{HST}, s2, 7
s_add_u32 s{HST}, s{HST}, {HT}
s_add_u32 s{HST+1}, s{HST}, 0x100000
""")
def clrh():
    k.vm(f"buffer_store_dwordx4 v[68:71], v{VHT}, {srd(SWS)}, s{HST} offen sc1", "clrh")
    k.vm(f"buffer_store_dwordx4 v[68:71], v{VHT}, {srd(SWS)}, s{HST+1} offen sc1", "clrh")
CLRE = opt("clre", 1)
if CLRE: clrh()
k(f"""
s_mov_b32 s{MASK}, 0xffff0000
s_mov_b32 s{ONES}, 0x3f803f80
s_and_b32 s{RG}, s2, 6
s_lshl_b32 s{RG}, s{RG}, 1
s_add_u32 s{RG}, s{RG}, s81
s_and_b32 s78, s2, 1
s_lshl_b32 s{RG2}, s{RG}, 1
s_add_u32 s{RG2}, s{RG2}, s78
s_lshl_b32 s{ROT1}, s81, 1
s_add_u32 s{ROT1}, s{ROT1}, s{DT}
s_mov_b32 s{ROT2}, s{ROT1}
s_cmp_ge_u32 s{ROT2}, 7
s_cselect_b32 s84, 7, 0
s_sub_u32 s{ROT2}, s{ROT2}, s84
s_mov_b32 s{SW1}, s36
s_mov_b32 s{SW1+1}, s37
s_mov_b32 s{SW1+2}, {512*1792*2}
s_mov_b32 s{SW1+3}, 0x20000
s_mov_b32 s{SW2}, s38
s_mov_b32 s{SW2+1}, s39
s_mov_b32 s{SW2+2}, {512*1792*2}
s_mov_b32 s{SW2+3}, 0x20000
s_mov_b32 s{SOUT}, s40
s_mov_b32 s{SOUT+1}, s41
s_mov_b32 s{SOUT+2}, 0x200000
s_mov_b32 s{SOUT+3}, 0x20000
s_mov_b32 s{SH1}, s42
s_mov_b32 s{SH1+1}, s43
s_cmp_lt_u32 s{DT}, 7
s_cselect_b32 s{SH1+2}, 0x10000000, 0
s_mov_b32 s{SH1+3}, 0x20000
v_lshrrev_b32 v53, 2, v{LANE}
v_mul_u32_u24 v{W1V}, 3584, v53
v_and_b32 v54, 3, v{LANE}
v_lshl_add_u32 v{W1V}, v54, 4, v{W1V}
v_add_u32 v{W1V+1}, {57344-1024}, v{W1V}
v_add_u32 v{W1V+2}, {2*(57344-1024)}, v{W1V}
v_add_u32 v{W1V+3}, {3*(57344-1024)}, v{W1V}
v_bfe_u32 v55, v{LANE}, 2, 3
v_lshlrev_b32 v{W2V}, 10, v55
v_lshrrev_b32 v55, 5, v{LANE}
v_lshl_add_u32 v{W2V}, v55, 6, v{W2V}
v_lshl_add_u32 v{W2V}, v54, 4, v{W2V}
v_add_u32 v{W2V+1}, 7168, v{W2V}
v_add_u32 v{W2V+2}, {2*7168}, v{W2V}
v_add_u32 v{W2V+3}, {3*7168}, v{W2V}
s_lshl_b32 s{RING}, s{WV}, 14
s_add_u32 s{RING+1}, s{RING}, 4096
s_add_u32 s{RING+2}, s{RING}, 8192
s_add_u32 s{RING+3}, s{RING}, 12288
s_mul_i32 s84, s{WV}, {28*16384}
s_lshl_b32 s78, s{DT}, 7
s_add_u32 s84, s84, s78
s_lshl_b32 s78, s{ROT2}, 16
s_add_u32 s{TW2}, s78, s84
s_add_u32 s85, s84, {7*65536}
""")
for g4 in range(7):
    if g4:
        k(f"s_add_u32 s{TW2+2*g4}, s{TW2+2*g4-2}, 65536")
        k(f"s_cmp_ge_u32 s{TW2+2*g4}, s85")
        k(f"s_cselect_b32 s{TW2+2*g4}, s84, s{TW2+2*g4}")
    k(f"s_add_u32 s{TW2+2*g4+1}, s{TW2+2*g4}, 32768")
k(f"""
s_lshl_b32 s84, s{FT}, 8
s_lshl_b32 s85, s{WV}, 6
s_add_u32 s84, s84, s85
s_lshr_b32 s85, s{WV}, 1
""")
for g in range(8):
    k(f"s_xor_b32 s78, s85, {g}")
    k(f"s_add_u32 s78, s78, s{ROT1}")
    k(f"s_and_b32 s78, s78, 7")
    k(f"s_mul_i32 s78, s78, {4*57344}")
    k(f"s_add_u32 s{TW1+g}, s78, s84")
bg.avail = ["R0", "R1", "R2", "R3"]
if opt("w0", 0): bg.issue_now(opt("w0", 0))
k(f"""
s_lshl_b32 s78, s{FT}, 13
s_lshl_b32 s79, s{WV}, 11
s_add_u32 s78, s78, s79
s_add_u32 s78, s78, {H1F}
s_mul_i32 s{H1B}, s{RG2}, 114688
s_add_u32 s{H1B}, s{H1B}, s78
s_xor_b32 s79, s{RG2}, 1
s_mul_i32 s{HB1}, s79, 114688
s_add_u32 s{HB1}, s{HB1}, s78
s_lshl_b32 s{SLC}, s{WV}, 12
s_add_u32 s{SLC}, s{SLC}, {RC}
s_add_u32 s{SLC+1}, s{SLC}, 16384
s_lshl_b32 s{SLC+2}, s{WV}, 13
s_add_u32 s{SLC+2}, s{SLC+2}, {RA+32768}
s_add_u32 s{SLC+3}, s{SLC+2}, 4096
v_lshrrev_b32 v{LP}, 5, v{LANE}
v_lshlrev_b32 v{LP}, 8, v{LP}
v_bfe_u32 v55, v{LANE}, 2, 2
v_lshl_add_u32 v{LP}, v55, 6, v{LP}
v_bfe_u32 v55, v{LANE}, 4, 1
v_lshl_add_u32 v{LP}, v55, 5, v{LP}
v_lshl_add_u32 v{LP}, v54, 3, v{LP}
v_add_u32 v{RD2}, s{RING}, v{LP}
v_add_u32 v{RDC}, s{SLC}, v{LP}
v_add_u32 v117, {RB}, v{RD2}
v_add_u32 v{RDU}, s{SLC+2}, v{LP}
s_and_b32 s78, s{WV}, 1
s_lshl_b32 s78, s78, 11
v_add_u32 v{RD0}, s78, v{RD2}
v_xor_b32 v{RD0+1}, 2048, v{RD0}
s_lshl_b32 s79, s85, 14
s_add_u32 s78, s78, s79
v_add_u32 v{AX}, s78, v{LP}
v_xor_b32 v{AX+1}, 2048, v{AX}
v_xor_b32 v{AX+2}, 16384, v{AX}
v_xor_b32 v{AX+3}, {2048+16384}, v{AX}
v_lshlrev_b32 v{T16}, 4, v0
v_mov_b32 v{ONE}, s{ONES}
v_mov_b32 v{ONE+1}, s{ONES}
v_mov_b32 v{ONE+2}, s{ONES}
v_mov_b32 v{ONE+3}, s{ONES}
v_bfe_u32 v55, v0, 1, 1
v_lshlrev_b32 v56, 4, v51
v_and_b32 v57, 1, v0
v_lshl_add_u32 v56, v57, 3, v56
v_mul_u32_u24 v{VU}, {UCH}, v55
v_sub_u32 v{VU}, v{VU}, v56
v_add_u32 v{VU}, {UC+16+1008}, v{VU}
v_lshl_add_u32 v{VXC}, v55, 12, v56
v_add_u32 v{VXC}, {XC}, v{VXC}
v_mul_u32_u24 v53, 0x020202, v55
v_lshl_or_b32 v53, v53, 8, v53
v_add_u32 v53, 0x05040100, v53
v_lshlrev_b32 v51, 16, v51
v_lshl_add_u32 v51, v54, 4, v51
s_and_b32 s79, s{WV}, 1
s_lshl_b32 s79, s79, 8
s_mul_i32 s81, s85, {KCH}
s_add_u32 s81, s81, s79
s_add_u32 s81, s81, {KC}
s_mul_i32 s83, s85, {UCH}
s_add_u32 s83, s83, s79
s_add_u32 s83, s83, {UC+16+448}
v_mul_u32_u24 v55, {KCS}, v54
v_bfe_u32 v56, v{LANE}, 2, 2
v_lshrrev_b32 v58, 4, v{LANE}
v_add_u32 v56, v56, v58
v_lshl_add_u32 v55, v56, 4, v55
v_add_u32 v{CVA}, s81, v55
v_mul_u32_u24 v55, {UCS}, v57
v_lshl_add_u32 v55, v58, 4, v55
v_bfe_u32 v56, v{LANE}, 1, 3
v_lshlrev_b32 v56, 6, v56
v_sub_u32 v55, v55, v56
v_add_u32 v{CVB}, s83, v55
v_add_u32 v{PW}, s{SLC}, v{L16}
v_lshlrev_b32 v{PR}, 10, v52
v_lshl_add_u32 v{PR}, v54, 8, v{PR}
v_bfe_u32 v55, v0, 3, 3
v_lshl_add_u32 v{PR}, v55, 5, v{PR}
v_bfe_u32 v55, v0, 2, 1
v_lshl_add_u32 v{PR}, v55, 13, v{PR}
v_add_u32 v{PR}, {CP}, v{PR}
v_lshrrev_b32 v56, 3, v0
v_lshlrev_b32 v56, 6, v56
v_lshl_add_u32 v56, v54, 4, v56
v_lshl_add_u32 v{XR}, v55, 12, v56
v_add_u32 v{XR}, {XC}, v{XR}
v_mul_u32_u24 v{UR}, {UCH}, v55
v_sub_u32 v{UR}, v{UR}, v56
v_add_u32 v{UR}, {UC + UCS + 16 + 2*2040 - 2048}, v{UR}
v_lshrrev_b32 v56, 5, v0
v_mul_u32_u24 v56, {UCS}, v56
v_and_b32 v60, 31, v0
v_lshl_add_u32 v56, v60, 4, v56
v_add_u32 v56, {UC+16+4080}, v56
v_lshrrev_b32 v60, 2, v60
v_mul_u32_u24 v60, {KCS}, v60
v_min_u32 v59, 2, v54
v_lshl_add_u32 v59, v59, 4, v60
v_add_u32 v59, {KC}, v59
v_cmp_gt_u32 vcc, 128, v0
v_mov_b32 v60, 0
v_mov_b32 v61, 0
v_cndmask_b32 v56, v59, v56, vcc
v_mov_b32 v62, 0
v_mov_b32 v63, 0
ds_write_b128 v56, v[60:63]
s_mul_i32 s78, s{WV}, {SCW}
s_add_u32 s78, s78, {SCR}
v_add_u32 v46, s78, v{L16}
v_lshrrev_b32 v47, 2, v{LANE}
v_lshlrev_b32 v47, 4, v47
v_bfe_u32 v48, v{LANE}, 1, 1
v_mul_u32_u24 v48, {SCH}, v48
v_add3_u32 v47, v47, v48, s78
v_lshl_add_u32 v47, v57, 3, v47
s_lshl_b32 s78, s{WV}, 11
s_add_u32 s78, s78, {EX}
v_add_u32 v48, s78, v{L16}
s_xor_b32 s78, s{WV}, 1
s_lshl_b32 s78, s78, 11
s_add_u32 s78, s78, {EX}
v_add_u32 v49, s78, v{L16}
s_add_u32 s78, s81, {3*KCS + 48}
v_and_b32 v59, 15, v{LANE}
v_lshl_add_u32 v59, v59, 4, s78
v_lshrrev_b32 v130, 5, v{LANE}
v_lshl_add_u32 v130, v130, 9, v59
v_bfe_u32 v131, v{LANE}, 4, 1
v_lshl_add_u32 v130, v131, 3, v130
v_lshl_add_u32 v131, v58, 9, v59
v_lshrrev_b32 v132, 7, v0
v_mul_u32_u24 v132, {KCH}, v132
v_and_b32 v59, 127, v0
v_lshl_add_u32 v132, v59, 5, v132
v_add_u32 v132, {KC+40}, v132
s_lshl_b32 s78, s{WV}, 4
s_add_u32 s78, s78, {STG}
v_mov_b32 v133, s78
v_add_u32 v134, {STG}, v{L16}
s_lshl_b32 s78, s2, 6
s_lshl_b32 s79, s{WV}, 2
s_add_u32 s78, s78, s79
s_add_u32 s78, s78, {CF}
v_mov_b32 v135, s78
""")
k.stamp("setup0")
k("s_waitcnt lgkmcnt(0)")
k.stamp("ep")
k(f"""
s_add_u32 s{TAG}, s{TAG}, 1
s_lshl_b32 s84, s{RBK}, 6
s_lshl_b32 s78, s71, 16
s_and_b32 s79, s71, s{MASK}
v_mov_b32 v{DSK}, s78
v_mov_b32 v{DSK+1}, s79
v_cmp_eq_u32 vcc, 1, v55
s_lshl_b32 s78, s70, 16
s_and_b32 s79, s70, s{MASK}
v_cndmask_b32 v{DSK}, v{DSK}, v{DSK+1}, vcc
s_cmp_lt_u32 s{WV}, 2
s_cselect_b32 s78, s78, s79
v_mov_b32 v136, 0x3fb8aa3b
v_mul_f32 v136, s78, v136
v_exp_f32 v136, v136
v_xor_b32 v{SG}, s{TAG}, v0
v_and_b32 v{SG}, 1, v{SG}
v_mul_u32_u24 v{SG}, 0x10001, v{SG}
v_lshlrev_b32 v{SG}, 15, v{SG}
v_mov_b32 v129, s{TAG}
""")
for j in range(4):
    k(f"v_mov_b32 v{72+4*j+2}, s{TAG}")
    k(f"v_mov_b32 v{72+4*j+3}, s{TAG+1}")
k(f"""
v_mov_b32 v67, s{TAG}
v_cvt_pk_bf16_f32 v136, v136, v136
v_lshlrev_b32 v136, 16, v136
s_mov_b32 s92, 0x3b000000
s_mov_b32 s93, 0x3b000000
""")
k.stamp("setup")
k.vmwait("xt")
k.stamp("xload")
for j in range(4):
    G = 72 + 4*j
    k(f"v_perm_b32 v{G}, v{28+j}, v{24+j}, v53")
    k(f"v_perm_b32 v{G+1}, v{36+j}, v{32+j}, v53")
    k(f"s_add_u32 s78, s84, {XT + j*16384}")
    k.vm(f"buffer_store_dwordx4 {vr(G,4)}, v51, {srd(SWS)}, s78 offen sc1", "xtst")
k.stamp("xst")
k.vmwait("xs")
S, Qq = 56, 58
for r in range(2):
    k(f"v_dot2_f32_bf16 v{S+r}, v{16+4*r}, s{ONES}, 0")
    k(f"v_dot2_f32_bf16 v{Qq+r}, v{16+4*r}, v{16+4*r}, 0")
for i in range(1, 4):
    for r in range(2):
        k(f"v_dot2_f32_bf16 v{S+r}, v{16+4*r+i}, s{ONES}, v{S+r}")
        k(f"v_dot2_f32_bf16 v{Qq+r}, v{16+4*r+i}, v{16+4*r+i}, v{Qq+r}")
k("s_nop 2")
for ctl in ["row_shr:1 row_mask:0xf bank_mask:0xf bound_ctrl:0", "row_shr:2 row_mask:0xf bank_mask:0xf bound_ctrl:0",
            "row_shr:4 row_mask:0xf bank_mask:0xf bound_ctrl:0", "row_shr:8 row_mask:0xf bank_mask:0xf bound_ctrl:0",
            "row_bcast:15 row_mask:0xa bank_mask:0xf", "row_bcast:31 row_mask:0xc bank_mask:0xf"]:
    for r in range(4):
        k(f"v_add_f32_dpp v{S+r}, v{S+r}, v{S+r} {ctl}")
k(f"""
v_pk_mul_f32 v[56:57], v[56:57], s[92:93]
v_pk_mul_f32 v[58:59], v[58:59], s[92:93]
v_pk_fma_f32 v[58:59], v[56:57], v[56:57], v[58:59] neg_lo:[1,0,0] neg_hi:[1,0,0]
v_cvt_pk_bf16_f32 v66, v56, v57
v_cvt_pk_bf16_f32 v60, v58, v59
v_pk_max_i16 v60, v60, 0
""")
unpack(58, 60)
k("v_add_f32 v58, 0x3727c5ac, v58\nv_add_f32 v59, 0x3727c5ac, v59\nv_cvt_pk_bf16_f32 v60, v58, v59")
unpack(58, 60)
k("v_sqrt_f32 v58, v58\nv_sqrt_f32 v59, v59\ns_nop 0\nv_cvt_pk_bf16_f32 v60, v58, v59")
unpack(58, 60)
k(f"""
v_rcp_f32 v64, v58
v_rcp_f32 v65, v59
s_mov_b32 exec_lo, 0
s_mov_b32 exec_hi, 0x80000000
""")
k.ds("ds_write_b128 v133, v[64:67]")
k("s_mov_b64 exec, -1")
k.dswait()
k("s_barrier")
k(f"""
s_cmp_lg_u32 s{WV}, 0
s_cbranch_scc1 Lnopub
s_mov_b64 exec, 0xf
ds_read_b128 v[64:67], v134
s_add_u32 s78, s84, {ST}
s_waitcnt lgkmcnt(0)
buffer_store_dwordx4 v[64:67], v{L16}, {srd(SWS)}, s78 offen sc1
s_mov_b64 exec, -1
""")
k.label("Lnopub")
k.stamp("pub")
k.vmwait("par")
k.stamp("par")
k.t += 3000; k.vdone = [k.t + opt('ack', 1200)]; T_PUB = k.t
for i_ in list(bg.land): bg.land[i_] = k.t + 600
if not CLRE: clrh()
def cf_pub():
    k.vmwait("clrh")
    k.vm(f"buffer_store_dword v129, v135, {srd(SWS)}, 0 offen sc1", "cf")
if CLRE: cf_pub()
PK = [56, 60, 100, 104]
FR = 160
def kmf(acc, ta, tb_, s):
    c = "0" if s == 0 else vr(acc,4)
    return f"v_mfma_f32_16x16x32_bf16 {vr(acc,4)}, {ar(FR+16*ta+4*s,4)}, {ar(FR+16*tb_+4*s,4)}, {c}"
KA = 32
with k.valu(opt("fk", 2)):
    for i in range(6):
        k(f"v_lshlrev_b32 v{40+i}, 16, v{40+i}")
    k(f"""
    s_mov_b32 s78, 0x3fb8aa3b
    s_mov_b32 s79, 0x3e22f983
    v_pk_mul_f32 v[40:41], v[40:41], v[136:137] op_sel_hi:[1,0]
    v_pk_mul_f32 v[42:43], v[42:43], v[136:137] op_sel_hi:[1,0]
    v_pk_mul_f32 v[40:41], v[40:41], s[78:79]
    """)
    WC = 52
    cmul(WC, 44, 42, negim=True)
    E = {}
    free = list(range(72, 100, 2))
    def newE(l):
        E[l] = free.pop(0); return E[l]
    def relE(*ls):
        for l in ls: free.append(E.pop(l))
    for l in (8, 128, 1): newE(l)
    k(f"v_mul_f32 v16, {f2h(8)}, v40\nv_mul_f32 v17, {f2h(8)}, v41\nv_mul_f32 v18, {f2h(128)}, v40\nv_mul_f32 v19, {f2h(128)}, v41")
    k(f"v_fract_f32 v17, v17\nv_fract_f32 v19, v19\nv_fract_f32 v41, v41")
    for l, a_ in ((8,16),(128,18),(1,40)):
        k(f"v_cos_f32 v{E[l]}, v{a_+1}\nv_sin_f32 v{E[l]+1}, v{a_+1}\nv_exp_f32 v{a_}, v{a_}")
    for l, a_ in ((8,16),(128,18),(1,40)):
        k(f"v_pk_mul_f32 {vr(E[l],2)}, {vr(E[l],2)}, {vr(a_,2)} op_sel_hi:[1,0]")
    def tile_reads(t):
        for s in range(4):
            for rd in range(2):
                k.ds(f"ds_read_b64_tr_b16 {ar(FR+16*t+4*s+2*rd,2)}, v47 offset:{512*s+256*rd}", f"kf{t}")
    pks = [0]
    def pack8(vals, hf):
        for ri in range(2):
            P = PK[pks[0] % 4]; pks[0] += 1
            for i in range(4):
                k(f"v_cvt_pk_bf16_f32 v{P+i}, {vals[2*i][ri]}, {vals[2*i+1][ri]}")
            k.ds(f"ds_write_b128 v46, {vr(P,4)} offset:{hf*SCH+1024*ri}")
            k.adv(12)
    cmul(54, WC, E[128], conj=True)
    newE(16); cmul(E[16], E[8], E[8])
    k(f"""
    s_bitcmp1_b32 s{WV}, 0
    s_cselect_b64 vcc, -1, 0
    v_cndmask_b32 v16, v{WC}, v54, vcc
    v_cndmask_b32 v17, v{WC+1}, v55, vcc
    v_cndmask_b32 v44, v54, v{WC}, vcc
    v_cndmask_b32 v45, v55, v{WC+1}, vcc
    """)
    GB = 16
    for t in range(2):
        if t == 1:
            k(f"v_mov_b32 v{GB}, v44\nv_mov_b32 v{GB+1}, v45")
        cmul(GB+2, GB, E[8], conj=True)
        for hf in range(2):
            if hf == 1:
                cmulN([(GB, GB+12, E[16]), (GB+2, GB+14, E[16])], conj=True)
            for i in range(1, 4):
                cmulN([(GB+4*i, GB+4*i-4, E[16]), (GB+4*i+2, GB+4*i-2, E[16])], conj=True)
            pack8([(f"v{GB+2*i}", f"v{GB+2*i+1}") for i in range(8)], hf)
        tile_reads(t)
    if not CLRE: cf_pub()
    relE(16)
    free += [16,18,20,22,24,26,28,30,40,42,44]
    def mk(*specs):
        lst = []
        for (l, a_, b_) in specs:
            assert a_ + b_ == l
            lst.append((newE(l), E[a_], E[b_]))
        cmulN(lst)
    def ev(l):
        return ("1.0", "0") if l == 0 else (f"v{E[l]}", f"v{E[l]+1}")
    mk((2,1,1),(256,128,128)); mk((3,2,1),(4,2,2),(512,256,256)); mk((5,4,1),(6,4,2),(7,4,3))
    pack8([ev(l) for l in range(8)], 0)
    relE(1,3,5,7,128)
    mk((258,256,2),(260,256,4),(262,256,6),(264,256,8))
    pack8([ev(l) for l in (256,256,258,260,260,260,262,264)], 1)
    tile_reads(2)
    relE(2,6,258,260,262,264)
    mk((516,512,4),(520,512,8),(1024,512,512),(768,512,256)); mk((1032,1024,8),(1280,1024,256),(1536,1024,512),(1792,1024,768)); mk((1288,1280,8),(772,768,4),(776,768,8))
    mk((1544,1536,8),(1800,1792,8))
    k.dswait("kf2")
    a0 = [kmf(acc, 2, tb_, s) for s in range(4) for (acc, tb_) in ((KA,1),(64,0))]
    for hf, ls in enumerate(((512,516,1024,1032,516,520,1280,1288), (768,772,1536,1544,772,776,1792,1800))):
        vals = [ev(l) for l in ls]
        for ri in range(2):
            P = PK[pks[0] % 4]; pks[0] += 1
            for i in range(4):
                k(f"v_cvt_pk_bf16_f32 v{P+i}, {vals[2*i][ri]}, {vals[2*i+1][ri]}")
                if i & 1: k(a0.pop(0))
            k.ds(f"ds_write_b128 v46, {vr(P,4)} offset:{hf*SCH+1024*ri}")
    tile_reads(3)
k.stamp("kchain")
def poll_issue(P, its, tag):
    for n, it in enumerate(its):
        k(f"s_lshl_b32 s78, s2, 14")
        k(f"s_add_u32 s78, s78, {XT + it*4096}")
        k(f"s_mov_b32 s79, {ST + it*4096}")
        k.vm(f"buffer_load_dwordx4 {vr(P+8*n,4)}, v{T16}, {srd(SWS)}, s78 offen sc1", tag); k.model_load(1200)
        k.vm(f"buffer_load_dwordx4 {vr(P+8*n+4,4)}, v{T16}, {srd(SWS)}, s79 offen sc1", tag); k.model_load(1200)
    if tag == "B":
        k(f"s_mov_b32 s79, {CF}")
        k(f"v_lshlrev_b32 v102, 6, v0")
        k.vm(f"buffer_load_dwordx4 v[104:107], v102, {srd(SWS)}, s79 offen sc1", tag); k.model_load(1200)
def poll_check(P, its, tag):
    L = f"Lp{tag}"
    def cmps():
        for n in range(2):
            k(f"v_cmpx_eq_u64 vcc, s[{TAG}:{TAG+1}], {vr(P+8*n+2,2)}")
            k(f"v_cmpx_eq_u32 vcc, s{TAG}, v{P+8*n+7}")
        if tag == "B":
            for n in range(4): k(f"v_cmpx_eq_u32 vcc, s{TAG}, v{104+n}")
        k("s_cmp_eq_u64 exec, -1\ns_mov_b64 exec, -1")
    k.vmwait(tag)
    cmps()
    k(f"s_cbranch_scc0 {L}")
    k.label(f"{L}_ret")
    k("s_nop 1")
    def stub():
        k.label(L)
        k(f"s_add_u32 s97, s97, 1\ns_cmp_ge_u32 s97, {SPIN}\ns_cbranch_scc1 {L}_ret")
        poll_issue(P, its, tag)
        k("s_waitcnt vmcnt(0)")
        cmps()
        k(f"s_cbranch_scc0 {L}\ns_branch {L}_ret")
    stubs.append(stub)
    k.note(97, 56 if tag == "A" else 57)
def ln_apply(P, its, T):
    for n, it in enumerate(its):
        X = P + 8*n; Gr = X + 4
        k.ds(f"ds_write_b64 v{VXC}, {vr(X,2)} offset:{1024*it}")
        O = T + 10 + 2*n
        qp = ["[0,2,0,2]", "[1,3,1,3]"]
        for d in range(2):
            k(f"v_mov_b32_dpp v{T+8+d}, v{Gr+2} quad_perm:{qp[d]} row_mask:0xf bank_mask:0xf")
        for d in range(2):
            unpack(T+4*d, X+d)
            unpack(T+4*d+2, T+8+d)
            k(f"v_pk_add_f32 {vr(T+4*d,2)}, {vr(T+4*d,2)}, {vr(T+4*d+2,2)} neg_lo:[0,1] neg_hi:[0,1]")
            k(f"v_cvt_pk_bf16_f32 v{T+4*d+2}, v{T+4*d}, v{T+4*d+1}")
        for d in range(2):
            unpack(T+4*d, T+4*d+2)
        for d in range(2):
            k(f"v_mul_f32_dpp v{T+4*d+1}, v{Gr+1}, v{T+4*d+1} quad_perm:{qp[d]} row_mask:0xf bank_mask:0xf")
            k(f"v_mul_f32_dpp v{T+4*d}, v{Gr}, v{T+4*d} quad_perm:{qp[d]} row_mask:0xf bank_mask:0xf")
        for d in range(2):
            k(f"v_cvt_pk_bf16_f32 v{O+1-d}, v{T+4*d+1}, v{T+4*d}")
        k.ds(f"ds_write_b64 v{VU}, {vr(O,2)} offset:{1024*(3-it)}")
        k.ds(f"ds_write_b64 v{VU}, {vr(O,2)} offset:{1024*(3-it) + UCS + 8}")
def idle(n):
    end = k.t + n
    old = k.infill; k.infill = True
    while k.t < end:
        if not bg.step(True): k.t += 8
    k.infill = old
PA, PB_ = 72, 32
k("s_mov_b32 s97, 0")
PAAT = opt("paat", 0)
if PAAT == 0: bg.finish_issue(); poll_issue(PA, (0,1), "A")
k("""
s_mov_b32 s92, 0xffff0000
s_mov_b32 s93, 0xffff0000
s_mov_b32 s94, 0xaaaaaaaa
s_mov_b32 s95, 0xaaaaaaaa
""")
k.ds(f"ds_write_b128 v48, {vr(KA,4)}")
idle(100)
k.dswait("kf3")
for s in range(4): k(kmf(KA+4, 3, 1, s))
for s in range(4): k(kmf(68, 3, 0, s))
k("s_nop 3")
k.ds(f"ds_write_b128 v48, {vr(KA+4,4)} offset:1024", "exw")
idle(60)
k.dswait("exw")
k("s_barrier")
k.stamp("kbar1")
k.ds("ds_read_b128 v[24:27], v49", "ex")
k.ds("ds_read_b128 v[28:31], v49 offset:1024", "ex")
if PAAT == 1: bg.finish_issue(); poll_issue(PA, (0,1), "A")
idle(100)
k.dswait("ex")
k.mode = "valu"; k.every = opt("ft", 3)
k(f"""
v_pk_add_f32 v[16:17], v[64:65], v[24:25]
v_pk_add_f32 v[18:19], v[66:67], v[26:27]
v_pk_add_f32 v[20:21], v[68:69], v[28:29]
v_pk_add_f32 v[22:23], v[70:71], v[30:31]
v_cvt_pk_bf16_f32 v24, v16, v17
v_cvt_pk_bf16_f32 v25, v18, v19
v_cndmask_b32 v16, v20, v21, s[92:93]
v_cndmask_b32 v17, v22, v23, s[94:95]
v_cvt_pk_bf16_f32 v26, v20, v20
v_cvt_pk_bf16_f32 v27, v16, v21
v_cvt_pk_bf16_f32 v28, v22, v22
v_cvt_pk_bf16_f32 v29, v22, v22
v_cvt_pk_bf16_f32 v30, v17, v23
v_cvt_pk_bf16_f32 v31, v23, v23
""")
k.ds("ds_write_b64 v130, v[24:25]", "tw")
k.ds("ds_write_b64 v130, v[26:27] offset:1024", "tw")
k.ds("ds_write_b128 v131, v[28:31] offset:2048", "tw")
idle(80)
k.dswait("tw")
k("s_barrier")
k.stamp("kbar2")
D = 14
k.ds(f"ds_read_b64 v[16:17], v132 offset:{3*KCS}", "s2")
k.ds(f"ds_read_b128 v[18:21], v132 offset:{3*KCS+8}", "s2")
k.ds(f"ds_read_b128 v[22:25], v132 offset:{3*KCS+24}", "s2")
idle(100)
k.dswait("s2")
for i in range(8):
    k(f"v_alignbit_b32 v{28+i}, v{D+4+i}, v{D+3+i}, 16")
k.ds(f"ds_write_b128 v132, v[28:31] offset:{2*KCS+8}")
k.ds(f"ds_write_b128 v132, v[32:35] offset:{2*KCS+24}")
for i in range(8):
    k(f"v_alignbit_b32 v{44+i}, v{D+3+i}, v{D+2+i}, 16")
k.ds(f"ds_write_b128 v132, v[44:47] offset:{8}")
k.ds(f"ds_write_b128 v132, v[48:51] offset:{24}")
for i in range(4):
    k(f"v_pk_mov_b32 {vr(60+2*i,2)}, {vr(D+2+2*i,2)}, {vr(D+4+2*i,2)} op_sel:[1,0]")
k.ds(f"ds_write_b128 v132, v[60:63] offset:{KCS+8}")
k.ds(f"ds_write_b128 v132, v[64:67] offset:{KCS+24}")
idle(150)
k.mode = None
k.stamp("kdone")
poll_check(PA, (0,1), "A")
k.stamp("syncA")
bg.finish_issue()
poll_issue(PB_, (2,3), "B")
bg.cold_ok = True
with k.valu(opt("fl", 3)):
    ln_apply(PA, (0,1), 88)
k.dq.append("uw"); k.dq.pop(-2)
idle(80)
k.dswait("uw")
k("s_barrier")
k.stamp("ubarA")
ACC = 80
def cfr(buf, kind, idx):
    o = (0 if kind == "A" else 32) + 4*idx
    return vr(16+o, 4) if buf == 0 else ar(160+o, 4)
def conv_reads(rp, nfr):
    buf = rp & 1
    out = []
    for i in range(nfr):
        out.append((f"ds_read_b128 {cfr(buf,'A',i)}, v{CVA} offset:{512*i + 64*rp}", f"cA{rp}_{i}"))
        out.append((f"ds_read_b128 {cfr(buf,'B',i)}, v{CVB} offset:{512*(7-i) + 64*rp}", f"cB{rp}_{i}"))
    return out
def conv_half(hf, hooks={}):
    nfr = 4 if hf == 0 else 8
    pairs = [(a_, c_) for a_ in range(nfr) for c_ in range(nfr) if 4*hf <= a_ + c_ <= 4*hf + 3]
    pairs.sort(key=lambda p: (max(p), p[0]+p[1]))
    for ins, tg in conv_reads(0, nfr): k.ds(ins, tg)
    k.adv(60)
    first = set()
    for rp in range(4):
        if rp in hooks: hooks[rp]()
        nxt_ = conv_reads(rp+1, nfr) if rp < 3 else []
        for (a_, c_) in pairs:
            m = max(a_, c_)
            k.dswait(f"cB{rp}_{m}")
            n = a_ + c_ - 4*hf
            cc = vr(ACC+4*n,4) if n in first else "0"
            first.add(n)
            k(f"v_mfma_f32_16x16x32_bf16 {vr(ACC+4*n,4)}, {cfr(rp&1,'A',c_)}, {cfr(rp&1,'B',a_)}, {cc}")
            if nxt_:
                ins, tg = nxt_.pop(0); k.ds(ins, tg)
            k.slack(maxD=opt("cmaxd", 1))
        for ins, tg in nxt_: k.ds(ins, tg)
def epi_pre(hf):
    bg.hi.append(("D", lambda: k.ds(f"ds_read_b128 v[64:67], v{UR} offset:{(1-hf)*2048}", "ux")))
    bg.hi.append(("D", lambda: k.ds(f"ds_read_b128 v[68:71], v{XR} offset:{hf*2048}", "ux")))
    t0 = []
    bg.hi.append(("A", lambda: t0.append(k.t)))
    bg.hi.append(("W", lambda: k.dswait("ux"), lambda: t0[0] + 120))
    ls = []
    for i in range(4):
        ls += unp(72, 67-i) + [f"v_mul_f32 v72, v72, v{DSK}", f"v_mul_f32 v73, v73, v{DSK}", f"v_cvt_pk_bf16_f32 v74, v73, v72"] + unp(16+2*i, 74) + unp(24+2*i, 68+i)
    hiA(ls)
def conv_epi1(hf):
    bg.drain_hi()
    k("s_nop 7")
    for n in range(4):
        k.ds(f"ds_write_b128 v{PW}, {vr(ACC+4*n,4)} offset:{hf*CPH + 1024*n}", "cw")
def conv_epi2(hf):
    k.ds(f"ds_read_b128 v[48:51], v{PR} offset:{hf*CPH}", "pp")
    k.ds(f"ds_read_b128 v[56:59], v{PR} offset:{hf*CPH+4096}", "pp")
    k.ds(f"ds_read_b128 v[52:55], v{PR} offset:{hf*CPH+16}", "pp")
    k.ds(f"ds_read_b128 v[60:63], v{PR} offset:{hf*CPH+4096+16}", "pp")
    idle(120)
    k.dswait("pp")
    for i in range(4):
        k(f"v_pk_add_f32 {vr(48+2*i,2)}, {vr(48+2*i,2)}, {vr(56+2*i,2)}")
        k(f"v_pk_add_f32 {vr(48+2*i,2)}, {vr(48+2*i,2)}, {vr(16+2*i,2)}")
        k(f"v_cvt_pk_bf16_f32 v74, v{48+2*i}, v{49+2*i}")
        unpack(72, 74)
        k(f"v_pk_add_f32 v[72:73], v[72:73], {vr(24+2*i,2)}")
        k(f"v_cvt_pk_bf16_f32 v{76+i}, v72, v73")
    k.vm(f"buffer_store_dwordx4 v[76:79], v{VHT}, {srd(SWS)}, s{HST+hf} offen sc1", f"hst{hf}")
def h_setup():
    ls = [f"s_lshr_b32 s79, s{WV}, 1", f"s_xor_b32 s81, s{RG2}, s79", "s_lshl_b32 s81, s81, 15", f"s_add_u32 s81, s81, {HT}",
          f"s_and_b32 s83, s{WV}, 1", f"s_add_u32 s83, s83, s{ROT1}"]
    for c in range(4):
        ls += [f"s_add_u32 s78, s83, {2*c}", "s_and_b32 s78, s78, 7", "s_lshl_b32 s78, s78, 12", f"s_add_u32 s{92+c}, s78, s81"]
    return ls
def h_first(hf, c):
    if hf == 0:
        k(f"s_mov_b32 m0, s{RING+c}\ns_mov_b32 s101, s{92+c}")
    else:
        k(f"s_or_b32 m0, s{RING+c}, {RB}\ns_add_u32 s101, s{92+c}, 0x100000")
def h_ins(i): return f"buffer_load_dwordx4 v{L16}, {srd(SWS)}, s101 offen offset:{1024*i} sc1 lds"
LH = opt("lh", 1000)
def h_queue(hf):
    for c in range(4):
        for i in range(4):
            def f(c=c, i=i):
                if i == 0:
                    sn = ("R" if hf == 0 else "B") + str(c)
                    bg.free_slots([sn])
                    if sn in bg.lasttag: k.dswait(bg.lasttag[sn])
                    h_first(hf, c)
                k.vm(h_ins(i), f"h{hf}_{c}")
            sn_ = ("R" if hf == 0 else "B") + str(c)
            rdy = (lambda sn_=sn_: bg.busy.get(sn_, 0) is not None and k.t >= bg.busy.get(sn_, 0)) if i == 0 else None
            bg.hv.append((f, LH if c == 0 else LHIT, 150 if c == 0 else 76, i < 3, rdy))
hiA(h_setup())
conv_half(0, {3: lambda: epi_pre(0)})
k.stamp("conv0")
conv_epi1(0)
poll_check(PB_, (2,3), "B")
k.stamp("syncB")
with k.valu(opt("fl", 3)):
    ln_apply(PB_, (2,3), 88)
k.dq.append("uw"); k.dq.pop(-2)
idle(80)
k.dswait("uw")
k("s_barrier")
with k.valu(opt("fe", 4)):
    conv_epi2(0)
k(f"""
s_or_b32 s78, s2, s{WV}
s_cmp_lg_u32 s78, 0
s_cbranch_scc0 Lep
""")
k.label("Lep_ret")
def ep_stub():
    k.label("Lep")
    k(f"""
    v_mov_b32 v72, s{TAG}
    v_mov_b32 v73, {EP}
    buffer_store_dword v72, v73, {srd(SWS)}, 0 offen
    s_branch Lep_ret
    """)
stubs.append(ep_stub)
k.stamp("cepi0")
G1A, BF, SA, SEL, HCK, SV, HV = 16, 48, 72, 96, 100, 14, 76
def hk2():
    pass
def hk3():
    bg.need(lambda g: g[0] == 1)
    bg.avail = []
    h_queue(0)
    epi_pre(1)
    hiA(f"""s_mov_b32 s91, 0
s_mov_b32 s70, 0xffff0000
s_mov_b32 s71, 0xffff0000
v_lshrrev_b32 v{SEL}, 4, v{LANE}
v_xor_b32 v{SEL}, v{SEL}, v{LANE}
v_and_b32 v{SEL}, 1, v{SEL}
v_add_u32 v{SEL}, -1, v{SEL}
v_and_b32 v{SEL}, s{ONES}, v{SEL}
v_mov_b32 v{SEL+1}, v{SEL}
v_mov_b32 v{SEL+2}, v{SEL}
v_mov_b32 v{SEL+3}, v{SEL}
v_add_u32 v{HCK}, s{RING}, v{L16}
v_lshlrev_b32 v102, 3, v{LANE}
v_add_u32 v102, {G1X}, v102
s_lshl_b32 s78, s{WV}, 9
v_add_u32 v101, s78, v102""".split("\n"))
conv_half(1, {3: hk3})
k.stamp("conv1")
conv_epi1(1)
bg.hiagpr_ok = True
idle(120)
k.dswait("cw")
k("s_barrier")
with k.valu(opt("fe", 4)):
    conv_epi2(1)
bg.finish_cs()
k.stamp("cepi1")
def g2reg(pos):
    return vr(108+4*pos, 4) if pos < 8 else w1reg(pos-8)
def g2r0(pos):
    return 108+4*pos if pos < 8 else 160+4*(pos-8)
def h1_table():
    ls = [f"s_mul_i32 s84, s{RG2}, 114688", f"s_mul_i32 s78, s{WV}, {28*1024}", "s_add_u32 s84, s84, s78", f"s_add_u32 s84, s84, {H1F}",
          f"s_lshl_b32 s78, s{ROT2}, 12", "s_add_u32 s16, s78, s84", f"s_add_u32 s85, s84, {7*4096}"]
    for g4 in range(1, 7):
        ls.append(f"s_add_u32 s{16+g4}, s{15+g4}, 4096\ns_cmp_ge_u32 s{16+g4}, s85\ns_cselect_b32 s{16+g4}, s84, s{16+g4}")
    return ls
def ftab(b): return 16 + b if b < 7 else 52 + (b - 7) if b < 11 else 64 + (b - 11)
def f_ins(b, i):
    return f"buffer_load_dwordx4 {g2reg(4*(b%7)+i)}, v{L16}, {srd(SWS)}, s{ftab(b)} offen offset:{1024*i} sc1"
def f_queue(b, rdy=None):
    for i in range(4):
        bg.hv.append((lambda i=i: k.vm(f_ins(b, i), f"f{b}"), LH if b % 7 == 0 else LHIT, 230 if b % 7 == 0 else 76, False, rdy))
def hchk_reads(c): return [f"ds_read_b128 {vr(HV+4*i,4)}, v{HCK} offset:{c*4096+i*1024}" for i in range(4)]
def hchk_alu():
    ls = [f"v_max3_u32 v{HV}, v{HV}, v{HV+1}, v{HV+2}"]
    for i in range(3, 15, 2): ls.append(f"v_max3_u32 v{HV}, v{HV}, v{HV+i}, v{HV+i+1}")
    ls += [f"v_max_u32 v{HV}, v{HV}, v{HV+15}", f"v_cmp_eq_u32 vcc, -1, v{HV}"]
    return ls
def hchk_branch(hf, c):
    L = f"Lhs_{hf}_{c}"
    k(f"s_cbranch_vccnz {L}")
    k.label(f"{L}_ret")
    def stub():
        k.label(L)
        k(f"s_mov_b32 s83, m0\ns_mov_b32 s81, s101")
        k.label(f"{L}_l")
        k(f"s_add_u32 s91, s91, 1\ns_cmp_ge_u32 s91, {SPIN}\ns_cbranch_scc1 {L}_x")
        h_first(hf, c)
        for i in range(4): k(h_ins(i))
        k("s_waitcnt vmcnt(0)")
        for l in hchk_reads(c): k(l)
        k("s_waitcnt lgkmcnt(0)")
        for l in hchk_alu(): k(l)
        k(f"s_cbranch_vccnz {L}_l")
        k.label(f"{L}_x")
        k(f"s_mov_b32 m0, s83\ns_mov_b32 s101, s81\ns_branch {L}_ret")
    stubs.append(stub)
def g1(hf, hooks):
    def rd_ins(n, tb):
        c, i = n // 8, n % 8
        for rd in range(2):
            k.ds(f"ds_read_b64_tr_b16 {vr(BF+8*(n%3)+4*tb+2*rd,2)}, v{AX+(i>>1)} offset:{tb*32768 + c*4096 + (i&1)*1024 + rd*512}", f"b{n}")
    bg.force_hv(f"h{hf}_0")
    k.vmwait(f"h{hf}_0")
    for l in hchk_reads(0): k.ds(l, "hv")
    k.adv(120)
    k.dswait("hv")
    for l in hchk_alu(): k(l)
    hchk_branch(hf, 0)
    k("s_barrier")
    k.stamp(f"g1w{hf}")
    for n in range(2):
        for tb in range(2): rd_ins(n, tb)
    k.adv(100)
    alu = []
    for n in range(32):
        if n in hooks: hooks[n]()
        k.dswait(f"b{n}")
        c1 = n//8 + 1; i = n % 8
        for tb in range(2):
            cc = "0" if n == 0 else vr(G1A+16*tb,16)
            k(f"v_mfma_f32_32x32x16_bf16 {vr(G1A+16*tb,16)}, {w1reg(n)}, {vr(BF+8*(n%3)+4*tb,4)}, {cc}")
            if tb == 0 and i == 6 and n < 24:
                if n == 22:
                    bg.free_slots(["C1"])
                    if "C1" in bg.lasttag: k.dswait(bg.lasttag["C1"])
                k("s_barrier"); k.t -= 32
            if n + 2 < 32: rd_ins(n+2, tb)
            if n < 24 and i in (1, 2):
                if i == 1 and tb == 0:
                    bg.force_hv(f"h{hf}_{c1}")
                    k.vmwait(f"h{hf}_{c1}")
                k.ds(hchk_reads(c1)[2*(i-1)+tb], "hv")
            elif n < 24 and i in (4, 5):
                if i == 4 and tb == 0: k.dswait("hv"); alu = hchk_alu()
                for l in alu[:3]: k(l)
                alu = alu[3:]
                if i == 5 and tb == 1: hchk_branch(hf, c1)
            elif n == 27 and tb == 0:
                k(f"v_cndmask_b32 v104, v{SA}, v{SA+1}, s[70:71]")
                k(f"v_cndmask_b32 v105, v92, v93, s[70:71]")
                k.ds(f"ds_write_b64 v101, v[104:105]", "sx")
            elif n == 28 and tb == 1:
                k.dswait("sx")
                k("s_barrier"); k.t -= 32
            elif n == 29:
                for j in range(2):
                    k.ds(f"ds_read_b64 {vr(76+4*tb+2*j,2)}, v102 offset:{512*(2*tb+j)}", "sr")
            elif n == 31 and tb == 0:
                k.dswait("sr")
                k("v_add_f32 v76, v76, v78\nv_add_f32 v80, v80, v82\nv_add_f32 v77, v77, v79\nv_add_f32 v81, v81, v83")
            elif n == 31 and tb == 1:
                k(f"v_add_f32 v{SV+hf}, v76, v80\nv_add_f32 v77, v77, v81")
                k(f"v_mul_f32 v76, 0x3b000000, v{SV+hf}\nv_mul_f32 v77, 0x3b000000, v77")
                k("v_cvt_pk_bf16_f32 v78, v76, v77")
                unpack(76, 78)
            k.slack()
            if i < 2:
                sa = SA if tb == 0 else 92
                cc = "0" if n == 0 else vr(sa,4)
                k(f"v_mfma_f32_16x16x32_bf16 {vr(sa,4)}, {vr(SEL,4)}, {vr(BF+8*(n%3)+4*tb,4)}, {cc}")
def g1_epi(hf):
    k("s_nop 3")
    for tb in range(2):
        sb = H1B if tb == 0 else HB1
        if hf:
            k(f"s_add_u32 s79, s{sb}, {32*114688}"); sb = 79
        for fr in range(2):
            O = 80 + 4*fr + 8*tb
            for d in range(4):
                r = G1A + 16*tb + 8*fr + 2*d
                k(f"v_pk_fma_f32 {vr(r,2)}, v[76:77], {vr(CS+8*fr+2*d,2)}, {vr(r,2)} op_sel:[{tb},0,0] op_sel_hi:[{tb},1,1] neg_lo:[1,0,0] neg_hi:[1,0,0]")
                k(f"v_cvt_pk_bf16_f32 v{O+d}, v{r}, v{r+1}")
                k(f"v_pk_max_i16 v{O+d}, v{O+d}, 0")
                k(f"v_or_b32 v{O+d}, v{O+d}, v{SG}")
            k.vm(f"buffer_store_dwordx4 {vr(O,4)}, v{L16}, {srd(SH1)}, s{sb} offen offset:{1024*fr} sc1", f"h1st{hf}")
def setav(l):
    def f(): bg.avail = l
    return f
H1AT = opt("h1at", 12)
def hk_h1(): bg.avail = ["C0"]; h_queue(1); hiA(h1_table())
g1(0, {0: setav(["C1", "B2", "B3", "C0"]), H1AT: hk_h1})
k.stamp("g1_0")
with k.valu(opt("fe", 4)):
    g1_epi(0)
    for i in range(4):
        k(f"v_add_u32 v{AX+i}, {RB}, v{AX+i}")
    k(f"v_add_u32 v{HCK}, {RB}, v{HCK}")
k.stamp("g1e0")
FAT = opt("fat", 20)
def wdone(g): return lambda: bg.ii > 8 + g
def hk_f(): f_queue(0, wdone(opt("wa", 5))); f_queue(1, wdone(opt("wa", 5)+2))
g1(1, {0: setav(["U0", "U1", "C0", "C1"]), 13: setav(["U0", "U1", "C0"]), FAT: hk_f})
k.stamp("g1_1")
f_queue(2, wdone(min(13, opt("wa", 5)+4)))
with k.valu(opt("fe", 4)):
    g1_epi(1)
bg.drain_hi()
k.note(91, 61)
k.stamp("g1e1")
k.mode = "valu"; k.every = 2
G2A = 16
k(f"""
s_lshl_b32 s78, s{WV}, 13
v_add_u32 v48, s78, v{LP}
v_add_u32 v49, {RB}, v48
""")
for hf in range(2):
    for u in range(8):
        for rd in range(2):
            k.ds(f"ds_read_b64_tr_b16 {vr(16+4*u+2*rd if hf == 0 else 52+4*u+2*rd,2)}, v{48+hf} offset:{u*1024+rd*512}", f"q{hf}")
k(f"""
v_and_b32 v96, 31, v{LANE}
v_lshlrev_b32 v97, 5, v96
v_lshrrev_b32 v98, 5, v{LANE}
v_lshl_add_u32 v97, v98, 2, v97
s_lshl_b32 s79, s{WV}, 3
s_add_u32 s79, s79, {QX}
v_add_u32 v97, s79, v97
v_lshlrev_b32 v96, 2, v96
v_add_u32 v96, {SXX}, v96
v_add_u32 v4, s78, v{L16}
""")
for hf in range(2):
    k.dswait(f"q{hf}")
    B = 16 if hf == 0 else 52
    for u in range(32):
        c = "0" if u < 2 else f"v{100+2*hf+(u&1)}"
        k(f"v_dot2_f32_bf16 v{100+2*hf+(u&1)}, v{B+u}, v{B+u}, {c}")
k(f"""
s_and_b32 s78, s{WV}, 1
s_lshr_b32 s79, s{WV}, 1
v_and_b32 v50, 15, v{LANE}
v_add_f32 v100, v100, v101
v_add_f32 v102, v102, v103
""")
k.ds(f"ds_write_b32 v97, v100")
k.ds(f"ds_write_b32 v97, v102 offset:1024")
k.ds(f"ds_write_b32 v96, v{SV}")
k.ds(f"ds_write_b32 v96, v{SV+1} offset:128", "qw")
k(f"""
s_lshl_b32 s81, s78, 4
v_add_u32 v50, s81, v50
v_lshrrev_b32 v51, 4, v{LANE}
s_lshl_b32 s81, s79, 2
v_add_u32 v51, s81, v51
v_lshlrev_b32 v5, 10, v51
v_lshl_add_u32 v5, v50, 4, v5
v_add_u32 v6, {RB}, v5
v_lshlrev_b32 v7, 10, v50
v_lshl_add_u32 v7, v51, 4, v7
v_lshlrev_b32 v104, 5, v50
v_add_u32 v104, {QX}, v104
v_lshlrev_b32 v105, 2, v50
v_add_u32 v105, {SXX}, v105
s_sub_u32 s81, s{DT}, s{ROT1}
s_and_b32 s83, s81, 1
s_lshl_b32 s83, s83, 14
s_bfe_u32 s81, s81, 0x20001
s_lshl_b32 s81, s81, 12
s_add_u32 s81, s81, s83
s_lshl_b32 s83, s78, 5
s_add_u32 s81, s81, s83
v_and_b32 v106, 0xd8, v{LP}
v_lshl_add_u32 v106, v51, 9, v106
v_add_u32 v106, s81, v106
v_add_u32 v107, {RB}, v106
v_add_u32 v13, {RB}, v4
s_lshl_b32 s98, s{RG2}, 15
s_lshl_b32 s79, s{DT}, 7
s_add_u32 s98, s98, s79
s_add_u32 s99, s98, 0x100000
s_mov_b32 s97, 0
s_mov_b32 s96, 0x80008000
""")
for g4 in range(7): k(f"s_add_u32 s{ftab(7+g4)}, s{16+g4}, {32*114688}")
k.mode = None
k.dswait("qw")
k("s_barrier")
k.stamp("g2start")
def hiD(ins, tag): bg.hi.append(("D", lambda: k.ds(ins, tag)))
def hiW(tag, lat=150):
    t0 = []
    bg.hi.append(("A", lambda: t0.append(k.t)))
    bg.hi.append(("W", lambda: k.dswait(tag), lambda: t0[0] + lat))
def r_queue():
    for ins in ("ds_read_b128 v[52:55], v104", "ds_read_b128 v[56:59], v104 offset:16", "ds_read_b128 v[60:63], v104 offset:1024", "ds_read_b128 v[64:67], v104 offset:1040",
                "ds_read_b32 v68, v105", "ds_read_b32 v69, v105 offset:128"): hiD(ins, "qr")
    hiW("qr")
    lines = []
    for hf in range(2):
        B = 52 + 8*hf
        for i in range(4): lines.append(f"v_add_f32 v{B+i}, v{B+i}, v{B+4+i}")
        lines += [f"v_add_f32 v{B}, v{B}, v{B+1}", f"v_add_f32 v{B+2}, v{B+2}, v{B+3}", f"v_add_f32 v{70+hf}, v{B}, v{B+2}"]
    for hf in range(2):
        lines += [f"v_mul_f32 v{68+hf}, 0x3b000000, v{68+hf}", f"v_mul_f32 v{70+hf}, 0x3b000000, v{70+hf}", f"v_fma_f32 v{70+hf}, -v{68+hf}, v{68+hf}, v{70+hf}"]
    lines += ["v_cvt_pk_bf16_f32 v72, v70, v71", "v_pk_max_i16 v72, v72, 0"] + unp(70, 72) + \
             ["v_add_f32 v70, 0x3727c5ac, v70", "v_add_f32 v71, 0x3727c5ac, v71", "v_cvt_pk_bf16_f32 v72, v70, v71"] + unp(70, 72) + \
             ["v_sqrt_f32 v70, v70", "v_sqrt_f32 v71, v71\ns_nop 0", "v_cvt_pk_bf16_f32 v72, v70, v71", f"v_or_b32 v72, v72, v{SG}"] + unp(70, 72) + \
             ["v_rcp_f32 v48, v70", "v_rcp_f32 v49, v71\ns_nop 0"]
    hiA(lines)
def fin_queue(hf, packed):
    P = 52
    for w in range(4):
        for g in range(2):
            hiD(f"ds_read_b128 {vr(P+8*w+4*g,4)}, v{5+hf} offset:{32768 + w*8192 + g*512}", "fp")
    for rd_ in range(2):
        hiD(f"ds_read_b64_tr_b16 {vr(84+2*rd_,2)}, v{106+hf} offset:{rd_*256}", "fp")
    hiW("fp")
    lines = []
    for i in range(4):
        a_ = P + 2*i
        if packed:
            lines += [f"v_pk_add_f32 {vr(a_,2)}, {vr(a_,2)}, {vr(a_+8,2)}", f"v_pk_add_f32 {vr(a_+16,2)}, {vr(a_+16,2)}, {vr(a_+24,2)}",
                      f"v_pk_add_f32 {vr(a_,2)}, {vr(a_,2)}, {vr(a_+16,2)}", f"v_pk_mul_f32 {vr(a_,2)}, {vr(a_,2)}, v[48:49] op_sel:[0,{hf}] op_sel_hi:[1,{hf}]"]
        else:
            for e in range(2):
                lines += [f"v_add_f32 v{a_+e}, v{a_+e}, v{a_+8+e}", f"v_add_f32 v{a_+16+e}, v{a_+16+e}, v{a_+24+e}",
                          f"v_add_f32 v{a_+e}, v{a_+e}, v{a_+16+e}", f"v_mul_f32 v{a_+e}, v{a_+e}, v{48+hf}"]
        lines += [f"v_cvt_pk_bf16_f32 v88, v{a_}, v{a_+1}"] + unp(a_, 88) + unp(a_+8, 84+i)
        if packed:
            lines += [f"v_pk_add_f32 {vr(a_,2)}, {vr(a_,2)}, {vr(a_+8,2)}"]
        else:
            lines += [f"v_add_f32 v{a_}, v{a_}, v{a_+8}", f"v_add_f32 v{a_+1}, v{a_+1}, v{a_+9}"]
        lines += [f"v_cvt_pk_bf16_f32 v{92+i}, v{a_}, v{a_+1}"]
    hiA(lines)
    bg.hi.append(("A", lambda: k.vm(f"buffer_store_dwordx4 v[92:95], v7, {srd(SOUT)}, s{98+hf} offen", "out")))
CK = 100
def chk_lines(b):
    r = [g2r0(4*(b%7)+i) for i in range(4)]
    regs = [x+d for x in r for d in range(4)]
    ls = [f"v_xor_b32 v{CK}, v{regs[0]}, v{SG}"]
    for x in regs[1:]:
        ls.append(f"v_bitop3_b32 v{CK}, v{CK}, v{x}, v{SG} bitop3:0xf6")
    ls.append(f"v_and_b32 v{CK}, s96, v{CK}")
    ls.append(f"v_cmp_ne_u32 vcc, 0, v{CK}")
    return ls
def chk_branch(b, upto):
    L = f"Lfs_{b}"
    k(f"s_cbranch_vccnz {L}")
    k.label(f"{L}_ret")
    def stub():
        k.label(L)
        k(f"s_add_u32 s97, s97, 1\ns_cmp_ge_u32 s97, {SPIN}\ns_cbranch_scc1 {L}_ret")
        for bb in range(b, upto+1):
            for i in range(4): k(f_ins(bb, i))
        k("s_waitcnt vmcnt(0)")
        for l in chk_lines(b): k(l)
        k(f"s_cbranch_vccnz {L}\ns_branch {L}_ret")
    stubs.append(stub)
for b_ in range(3): bg.force_hv(f"f{b_}")
k.vmwait("f0")
for l in chk_lines(0): k(l)
chk_branch(0, 2)
k.stamp("g2f0")
r_queue()
for b in range(14):
    hf = b // 7
    ck = chk_lines(b+1) if b + 1 < 14 else []
    if b == 8:
        bg.drain_hi()
        k.dswait("pw0")
        k("s_barrier")
        fin_queue(0, False)
    if b < 7:
        bg.need(lambda g: g[0] == 1 or g[1] <= 2*b+1)
        k.dswait(f"r{8+2*b+1}")
    if b + 3 < 14: f_queue(b+3, wdone(min(13, 2*(b+3)+opt("wa", 5))))
    for m in range(8):
        pos = 4*(b%7) + m//2; t = m & 1
        cc = "0" if pos == 0 else vr(G2A+16*t,16)
        k(f"v_mfma_f32_32x32x16_bf16 {vr(G2A+16*t,16)}, {ar(8*pos+4*t,4)}, {g2reg(pos)}, {cc}")
        if ck and m >= 3:
            if m == 3: bg.force_hv(f"f{b+1}"); k.vmwait(f"f{b+1}")
            for l in ck[(m-3)*4:(m-3)*4+4]: k(l)
            if m == 7: chk_branch(b+1, min(b+3, 13))
        k.slack()
    if b % 7 == 6:
        k("s_nop 7\ns_nop 3")
        for j in range(8):
            k.ds(f"ds_write_b128 v{4 if hf == 0 else 13}, {vr(G2A+4*j,4)} offset:{32768 + j*1024}", f"pw{hf}")
        k.stamp(f"g2_{hf}")
bg.drain_hi()
k.note(97, 60)
k.dswait()
k("s_barrier")
k.stamp("g2bar")
fin_queue(1, True); bg.drain_hi()
print("model t from pub:", k.t - T_PUB); print(" ".join(x.split("@")[0] + "@" + str(int(x.split("@")[1]) - T_PUB) for x in bg.log))
finish()
```

```python
import re, sys
TRANS = ("v_exp_f32", "v_sin_f32", "v_cos_f32", "v_rcp_f32", "v_sqrt_f32", "v_rsq_f32", "v_log_f32")
def regs(op):
    op = op.strip().lstrip("-")
    m = re.fullmatch(r"([vas])\[(\d+):(\d+)\]", op)
    if m: return [f"{m.group(1)}{i}" for i in range(int(m.group(2)), int(m.group(3))+1)]
    if re.fullmatch(r"[vas]\d+", op): return [op]
    if op == "vcc": return ["vcc"]
    if op in ("exec", "exec_lo", "exec_hi"): return ["exec"]
    if op == "m0": return ["m0"]
    return []
def parse(line):
    line = line.split(";")[0].strip()
    if not line or line.endswith(":") or line.startswith("."): return None
    parts = line.split(None, 1)
    m = parts[0].replace("_e64", "").replace("_e32", "")
    rest = parts[1] if len(parts) > 1 else ""
    toks = [t.strip() for t in re.split(r",(?![^\[]*\])", rest)]
    ops = []
    for t in toks:
        ops.append(t.split()[0] if t else "")
    R = [regs(o) for o in ops]
    wr, rd = [], []
    kind = "other"
    if m.startswith("v_mfma"):
        kind = "mfma"; wr = R[0]; rd = R[1] + R[2] + R[3]
    elif m.startswith("ds_read"):
        kind = "ds"; wr = R[0]; rd = sum(R[1:], [])
    elif m.startswith("ds_write"):
        kind = "ds"; rd = sum(R, [])
    elif m.startswith(("buffer_load", "global_load")):
        kind = "vm"
        if line.endswith(" lds"): rd = sum(R, []) + ["m0"]
        else: wr = R[0]; rd = sum(R[1:], [])
    elif m.startswith(("buffer_store", "global_store", "global_atomic")):
        kind = "vm"; rd = sum(R, [])
    elif m.startswith("v_"):
        kind = "valu"; wr = R[0]; rd = sum(R[1:], [])
        if m.startswith("v_cmpx"): wr = wr + ["exec"]
        if m == "v_writelane_b32" or "dpp" in m: rd = rd + R[0]
        if m.startswith("v_pk_") and "f32" in m:
            sel = re.search(r"op_sel:\[([\d,]+)\]", line); selh = re.search(r"op_sel_hi:\[([\d,]+)\]", line)
            n = len(R) - 1
            lo = [int(x) for x in sel.group(1).split(",")] if sel else [0]*n
            hi = [int(x) for x in selh.group(1).split(",")] if selh else [1]*n
            rd = []
            for i in range(n):
                if len(R[1+i]) == 2: rd += list({R[1+i][lo[i]], R[1+i][hi[i]]})
                else: rd += R[1+i]
    elif m.startswith("s_"):
        kind = "salu"
        if m.startswith(("s_cmp", "s_bitcmp", "s_cbranch", "s_branch", "s_waitcnt", "s_nop", "s_barrier", "s_endpgm", "s_sleep")): rd = sum(R, [])
        else: wr = R[0] if R else []; rd = sum(R[1:], [])
        if m.startswith(("s_load", "s_memtime", "s_memrealtime")): kind = "smem"
    return dict(m=m, wr=wr, rd=rd, kind=kind, line=line, R=R)
def lint(path):
    ins = []
    started = False
    for ln in open(path):
        if ln.startswith("Lstart:"): started = True
        if not started: continue
        p = parse(ln)
        if p:
            ins.append(p)
            if p["m"] == "s_endpgm": break
    errs = []
    def states(i): return int(ins[i]["line"].split()[1]) + 1 if ins[i]["m"] == "s_nop" else 1
    for i, a in enumerate(ins):
        def scan(need, pred, why):
            d = 0
            for j in range(i+1, len(ins)):
                if d >= need: break
                if pred(ins[j]): errs.append(f"{why}: need {need} have {d}\n    {a['line']}\n    {ins[j]['line']}")
                d += states(j)
        W = set(a["wr"])
        if a["kind"] == "valu":
            VW = {r for r in W if r[0] in "va" and r != "vcc"}
            SW = W - VW
            scan(2, lambda b: b["kind"] == "mfma" and VW & set(b["rd"]), "valu->mfma")
            scan(2, lambda b: "dpp" in b["m"] and VW & set(b["rd"]), "valu->dpp")
            scan(1, lambda b: b["m"] in ("v_readfirstlane_b32", "v_readlane_b32") and VW & set(b["rd"]), "valu->readlane")
            if a["m"] in TRANS: scan(1, lambda b: b["kind"] in ("valu",) and b["m"] not in TRANS and VW & set(b["rd"]), "trans->valu")
            if a["m"].startswith("v_dot2"): scan(3, lambda b: b["m"] != a["m"] and b["kind"] in ("valu","ds","vm","mfma") and VW & set(b["rd"] + b["wr"]), "dot->other")
            if SW - {"exec"}:
                scan(2, lambda b: b["kind"] == "valu" and SW & set(b["rd"]), "valu sgpr->valu")
                scan(5, lambda b: b["kind"] == "vm" and SW & set(b["rd"]), "valu sgpr->vmem")
            if "exec" in SW:
                scan(4, lambda b: b["kind"] == "mfma", "valu exec->mfma"); scan(5, lambda b: "dpp" in b["m"], "valu exec->dpp")
        if a["kind"] == "mfma":
            big = "32x32" in a["m"]
            scan(12 if big else 8, lambda b: b["kind"] in ("valu","ds","vm") and W & set(b["rd"] + b["wr"]), "mfma D->valu/mem")
            scan(12 if big else 8, lambda b: b["kind"] == "mfma" and W & set(b["R"][1] + b["R"][2]), "mfma D->mfma AB")
            scan(10 if big else 6, lambda b: b["kind"] == "mfma" and W & set(b["R"][3]) and not (b["R"][3] == a["R"][0] and b["m"] == a["m"]), "mfma D->mfma C overlap")
            C = set(a["R"][3])
            scan(7 if big else 3, lambda b: b["kind"] == "valu" and C & set(b["wr"]), "mfma C WAR")
        if a["kind"] == "vm" and "store_dwordx4" in a["m"]:
            Dd = set(a["R"][0])
            scan(2, lambda b: b["kind"] == "valu" and Dd & set(b["wr"]), "store data WAR")
        if a["kind"] == "salu" and "m0" in W:
            scan(1, lambda b: b["kind"] == "vm" and "m0" in b["rd"], "m0->dma")
    vq, dq, sq = [], [], []
    for i, a in enumerate(ins):
        if a["m"] == "s_waitcnt":
            m = re.search(r"vmcnt\((\d+)\)", a["line"])
            if m: n = int(m.group(1)); vq = vq[len(vq)-n:] if n else []
            m = re.search(r"lgkmcnt\((\d+)\)", a["line"])
            if m:
                n = int(m.group(1)); dq = dq[len(dq)-n:] if n else []
                if n == 0: sq = []
            continue
        touched = set(a["rd"]) | set(a["wr"])
        for q, nm in ((vq, "vmem"), (dq, "lds"), (sq, "smem")):
            for o in q:
                if touched & set(o["wr"]):
                    if nm == "smem" and o["m"].startswith("s_mem"): continue
                    if a["kind"] == o["kind"] and not (set(a["rd"]) & set(o["wr"])): continue
                    errs.append(f"pending {nm} load touched\n    {o['line']}\n    {a['line']}")
        if a["kind"] == "vm": vq.append(a)
        if a["kind"] == "ds": dq.append(a)
        if a["kind"] == "smem": sq.append(a)
    return errs
if __name__ == "__main__":
    e = lint(sys.argv[1])
    print(f"lint: {len(e)} problems")
    for x in e[:40]: print(x)
```

```python
import sys, struct
from kb2 import *
DIAG = "diag" in sys.argv
OUT = [x for x in sys.argv[1:] if x.endswith(".s")][0]
def opt(name, default):
    for a in sys.argv:
        if a.startswith(name + "="): return int(a.split("=")[1])
    return default
def f2h(x): return hex(struct.unpack('<I', struct.pack('<f', float(x)))[0])

XT, HT, H1F, ST, CF, EP, STAMPS = 0x0, 0x400000, 0x600000, 0xD00000, 0xD08000, 0xD10000, 0xE00000
RA, RB, RC = 0, 65536, 131072
KC = RB; KCS = 4160; KCH = 4*KCS
UC = RB + 2*KCH; UCS = 4640; UCH = 9472
XC = UC + 2*UCH
assert XC + 8192 <= RC and UCH % 256 == 0 and UCH >= 2*UCS
SCR = RC; SCW = 4352; SCH = 2176
EX = RC + 4*SCW
STG = EX + 8192
CP = RC; CPH = 16384
G1X = RC + 16384
QX = RC + 24576; SXX = QX + 2048
SPIN = 200000

k = K2(DIAG); k.VSTAMP = 143
L16, VHT, LP, AX, W2V, LANE, RD2, CVA, CVB = 1, 2, 3, 4, 8, 12, 13, 14, 15
RD0, T16, VU, VU2, VXC, PW, PR, XR, UR, DSK, W1V = 108, 110, 111, 112, 113, 114, 115, 116, 117, 118, 124
RDB, RDC, RDU, SG = 139, 140, 141, 142
SEL, CSA, AE, BX = 144, 148, 148, 152
def w1reg(n, off=0, cnt=4):
    return vr(160+4*n+off, cnt) if n < 24 else ar(224+4*(n-24)+off, cnt)
WV = 3
SWS, SW1, SW2, SOUT, SH1 = 44, 52, 56, 60, 64
SLC = 48
TAG = 68
RG, FT, RG2, DT, ROT1, ROT2 = 72, 73, 74, 75, 76, 77
MASK, ONES = 80, 82
HST, H1B, RBK, HB1 = 86, 88, 89, 90
TW1, TW2, RING = 16, 24, 38
def srd(r): return f"s[{r}:{r+3}]"
def L(s): return [l.strip() for l in s.strip().split("\n") if l.strip() and not l.strip().startswith(";")]

def cmul_a(d, x, y, negim=False):
    return f"v_pk_mul_f32 {vr(d,2)}, {vr(x,2)}, {vr(y,2)} op_sel:[0,0] op_sel_hi:[1,0]" + (" neg_hi:[1,0]" if negim else "")
def cmul_b(d, x, y, conj=False, negim=False):
    m = "neg_lo:[1,0,0] neg_hi:[1,0,0]" if negim else ("neg_hi:[1,0,0]" if conj else "neg_lo:[1,0,0]")
    return f"v_pk_fma_f32 {vr(d,2)}, {vr(x,2)}, {vr(y,2)}, {vr(d,2)} op_sel:[1,1,0] op_sel_hi:[0,1,1] {m}"
def cmul(d, x, y, conj=False, negim=False):
    k(cmul_a(d, x, y, negim)); k(cmul_b(d, x, y, conj, negim))
def cmulN(lst, conj=False):
    for (d, x, y) in lst: k(cmul_a(d, x, y))
    for (d, x, y) in lst: k(cmul_b(d, x, y, conj))
def unp(d, s):
    return [f"v_and_b32 v{d+1}, s{MASK}, v{s}", f"v_lshlrev_b32 v{d}, 16, v{s}"]
def unpack(d, s):
    for l in unp(d, s): k(l)

LHIT, LCOLD = opt("lhit", 500), opt("lcold", 1000)
SLOT = {f"R{i}": (RING+i, RD2, i*4096) for i in range(4)}
SLOT.update({f"B{i}": (-(RING+i), RDB, i*4096) for i in range(4)})
SLOT.update({"C0": (SLC, RDC, 0), "C1": (SLC+1, RDC, 16384), "U0": (SLC+2, RDU, 0), "U1": (SLC+3, RDU, 4096)})
ORD = [x.split("=")[1] for x in sys.argv if x.startswith("ord=")]
ORD = ORD[0] if ORD else "ABCDEFGHabcdefghijklmn"
class BG:
    def __init__(s):
        s.G = [((1, ord(c)-65) if c.isupper() else (2, ord(c)-97)) for c in ORD]
        assert len(s.G) == 22
        s.cold = {(1,0),(1,1),(2,0),(2,1),(2,2),(2,3)}
        s.ii = 0; s.isub = 0; s.ci = 0; s.csub = 0
        s.slot = {}; s.land = {}
        s.avail = []; s.busy = {}; s.lasttag = {}
        s.hi = []; s.hv = []; s.hilock = False
        s.hiagpr_ok = False; s.w2ok = False; s.cap = opt("cap", 9)
        s.csn = 0; s.rdone = {}
        s.log = []; s.tl = {}
    def canV(s): return k.t - k.lastV >= k.VSP and k.inflight() < s.cap
    def _dma(s):
        kind, g = s.G[s.ii]; i = s.isub
        if kind == 1: k.vm(f"buffer_load_dwordx4 v{W1V+i}, {srd(SW1)}, s{TW1+g} offen offset:{1024*i} lds", f"w{s.ii}")
        else: k.vm(f"buffer_load_dwordx4 v{W2V+i}, {srd(SW2)}, s{TW2+g} offen offset:{1024*i} lds", f"w{s.ii}")
        s.land[s.ii] = k.model_load(LCOLD, opt('scold', 230)) if (kind, g) in s.cold else k.model_load(LHIT)
        s.isub += 1
        if s.isub == 4: s.isub = 0; s.ii += 1
    def _free(s, force=False):
        for n in s.avail:
            b = s.busy.get(n, -1000)
            if b is not None and (force or k.t >= b): return n
        return None
    def _start(s, n):
        if n in s.lasttag: k.dswait(s.lasttag[n])
        k(f"s_mov_b32 m0, s{SLOT[n][0]}" if SLOT[n][0] > 0 else f"s_or_b32 m0, s{-SLOT[n][0]}, {RB}")
        s.slot[s.ii] = n; s.busy[n] = None
        s.log.append(f"I{ORD[s.ii]}:{n}@{k.t}")
        s._dma()
    def _read(s):
        n = s.ci; kind, g = s.G[n]; j = s.csub; sl = s.slot[n]; _, areg, off = SLOT[sl]
        assert s.consumable()
        if j == 0:
            k.vmwait(f"w{n}"); k.t = max(k.t, s.land[n]); s.log.append(f"C{ORD[n]}@{k.t}")
        if kind == 1:
            assert sl[0] == "R"
            i, rd = j >> 1, j & 1
            k.ds(f"ds_read_b64_tr_b16 {w1reg(4*g+i, 2*rd, 2)}, v{RD0+(i>>1)} offset:{off + (i&1)*1024 + rd*512}", f"r{n}")
        else:
            kk, t, rd = j >> 2, (j >> 1) & 1, j & 1
            k.ds(f"ds_read_b64_tr_b16 {ar(8*(2*g+kk)+4*t+2*rd,2)}, v{areg} offset:{off + (2*kk+rd)*1024 + t*512}", f"r{n}")
        s.csub += 1
        if s.csub == 8:
            s.csub = 0; s.ci += 1; s.busy[sl] = k.t + 150; s.lasttag[sl] = f"r{n}"
            if kind == 1: s.rdone[g] = (k.t + 150, f"r{n}")
    def _cs(s):
        g, i = s.csn >> 2, s.csn & 3
        if i == 0: k.dswait(s.rdone[g][1])
        c = "0" if s.csn == 0 else vr(CSA,4)
        k(f"v_mfma_f32_16x16x32_bf16 {vr(CSA,4)}, {vr(SEL,4)}, {w1reg(s.csn)}, {c}")
        s.csn += 1
    def _hi(s):
        it = s.hi.pop(0); it[1]()
    def consumable(s):
        if s.ci >= s.ii: return False
        kind, g = s.G[s.ci]
        return not (kind == 2 and g >= 10 and not s.hiagpr_ok)
    def vstep(s):
        if not s.canV(): return False
        if s.isub: s._dma(); return True
        if s.hv:
            it = s.hv[0]
            if it[4] is None or it[4](): s._hv(); return True
            if s.hilock: return False
        if not s.hilock and s.ii < len(s.G):
            n = s._free()
            if n and not (s.G[s.ii][0] == 1 and n[0] != "R") and (s.w2ok or s.G[s.ii][0] == 1): s._start(n); return True
        return False
    def _hv(s):
        it = s.hv.pop(0); it[0](); s.tl[k.vq[-1]] = k.model_load(it[1], it[2]); s.hilock = it[3]
    def wait(s, tag):
        s.force_hv(tag)
        idle(max(0, s.tl.get(tag, 0) - k.t))
        k.vmwait(tag)
    def histep(s, valu=True, maxD=3):
        if s.hi:
            ty = s.hi[0][0]
            if ty == "A" or (ty == "D" and (valu or k.gapD < maxD)): s._hi(); return True
            if ty == "W" and k.t >= s.hi[0][2](): s._hi(); return True
        return False
    def step(s, valu, maxD=3):
        if s.vstep(): return True
        if s.histep(valu, maxD): return True
        if valu and s.csn < 32 and k.t >= k.pipe and (s.csn >> 2) in s.rdone and k.t >= s.rdone[s.csn >> 2][0]:
            s._cs(); return True
        if s.consumable() and (s.csub or k.t >= s.land[s.ci]) and (valu or k.gapD < maxD):
            s._read(); return True
        return False
    def _forced(s, fn):
        old = k.infill; k.infill = True; fn(); k.infill = old
    def push(s, n):
        def f():
            for _ in range(n):
                if not s.histep(False, 4): break
        s._forced(f)
    def drain_hi(s):
        def f():
            while s.hi:
                s.vstep(); s._hi()
        s._forced(f)
    def force_hv(s, tag, cnt=4):
        def f():
            while k.cntv.get(tag, 0) < cnt:
                while s.isub: s._dma()
                s._hv()
        s._forced(f)
    def free_slots(s, names):
        def f():
            while s.isub: s._dma()
            while any(s.busy.get(n, 0) is None for n in names): s._read()
        s._forced(f)
    def need(s, pred, issue_only=False):
        def f():
            last = max(i for i, g in enumerate(s.G) if pred(g))
            while (s.ii if issue_only else s.ci) <= last:
                while s.hilock: s._hv()
                while s.isub: s._dma()
                if issue_only and s.ii > last: break
                n = s._free(True)
                if s.ii <= last and n: s._start(n)
                else: s._read()
        s._forced(f)
    def finish_cs(s):
        def f():
            while s.csn < 32: s._cs()
        s._forced(f)
bg = BG(); k.bg = bg
NOW = opt("now", 0)
if NOW:
    bg.ii = bg.ci = 22; bg.csn = 32
def hiA(lines):
    for l in lines: bg.hi.append(("A", lambda l=l: k(l)))
def hiF(fn): bg.hi.append(("A", fn))
def hiD(ins, tag="_"): bg.hi.append(("D", lambda: k.ds(ins, tag)))
def hiW(tag, lat=150):
    t0 = []
    bg.hi.append(("A", lambda: t0.append(k.t)))
    bg.hi.append(("W", lambda: k.dswait(tag), lambda: t0[0] + lat))
def idle(n):
    end = k.t + n
    old = k.infill; k.infill = True
    while k.t < end:
        if not bg.step(True): k.t += 8
    k.infill = old

stubs = []
def finish():
    if DIAG:
        k.mode = None
        k("s_waitcnt vmcnt(0)")
        k.stamp("end")
        k("s_memrealtime s[92:93]")
        k.flush_stamps()
        k(f"v_writelane_b32 v{k.VSTAMP}, s14, 62")
        k(f"v_writelane_b32 v{k.VSTAMP}, s92, 63")
        k(f"s_lshl_b32 s78, s2, 10\ns_add_u32 s78, s78, {STAMPS}\nv_lshlrev_b32 v16, 2, v0")
        k(f"buffer_store_dword v{k.VSTAMP}, v16, {srd(SWS)}, s78 offen")
        open(OUT[:-2] + ".names", "w").write("\n".join(k.stampnames))
    k.label("Lend")
    k("s_endpgm")
    for st_ in stubs: st_()
    if opt("padk", 0):
        for _ in range(opt("padk", 0)*128): k("v_fma_f32 v1, v1, v1, v1")
        k("s_endpgm")
    k.label("Lcodeend")
    lines = align_pass(k.lines) if opt("align", 1) else k.lines
    open(OUT, "w").write(single_file("\n".join(lines) + "\n", 256, 256, 163840, 512, sgpr=102, accum=256))
    import lint
    e = lint.lint(OUT)
    print(f"lint: {len(e)} problems"); print("\n".join(e[:10]))
    sys.exit(0)
STOP = [x.split("=")[1] for x in sys.argv if x.startswith("stop=")]
_st = k.stamp
ONLY = [x.split("=")[1].split(",") for x in sys.argv if x.startswith("only=")]
def stamp2(name=""):
    if not ONLY or name in ONLY[0] or name in ("start", "end"): _st(name)
    bg.log.append(f"[{name}]@{k.t}")
    if STOP and name == STOP[0]: finish()
k.stamp = stamp2
k.label("Lstart")
k("""
s_load_dwordx16 s[16:31], s[0:1], 0
s_load_dwordx8 s[32:39], s[0:1], 64
s_load_dwordx2 s[40:41], s[0:1], 96
s_load_dwordx2 s[42:43], s[0:1], 112
s_getpc_b64 s[90:91]
s_cmp_ge_u32 s2, 256
s_cbranch_scc1 Lend
""")
if DIAG:
    k("s_memrealtime s[14:15]")
    k(f"v_mov_b32 v{k.VSTAMP}, 0")
k.stamp("start")
k(f"""
s_lshl_b32 s78, s2, 10
s_and_b32 s78, s78, 0x6000
v_lshrrev_b32 v51, 2, v0
v_lshl_add_u32 v137, v51, 7, s78
v_min_u32 v137, Lcodeend-Lstart-48, v137
""")
if opt("cpf", 1): k.vm("global_load_dword v138, v137, s[90:91]", "code")
k(f"""
s_and_b32 s{RBK}, s2, 7
s_lshl_b32 s{RBK}, s{RBK}, 5
s_lshr_b32 s79, s2, 3
s_add_u32 s{RBK}, s{RBK}, s79
s_lshl_b32 s84, s{RBK}, 13
v_and_b32 v54, 3, v0
v_lshl_add_u32 v50, v54, 11, s84
v_lshl_add_u32 v50, v51, 4, v50
s_lshl_b32 s78, s2, 9
v_lshl_add_u32 v53, v0, 1, s78
v_mov_b32 v55, {EP}
s_lshl_b32 s78, s2, 2
v_mov_b32 v56, s78
s_waitcnt lgkmcnt(0)
""")
k.vm("global_load_dwordx2 v[74:75], v55, s[42:43]", "ep")
for i in range(2):
    k.vm(f"global_load_dwordx4 {vr(16+4*i,4)}, v50, s[16:17] offset:{1024*i}", "x")
k.stamp("karg")
for i in range(6):
    k.vm(f"global_load_ushort v{40+i}, v53, s[{18+2*i}:{19+2*i}]", "par")
k.vm("global_load_dword v136, v56, s[30:31]", "par")
k.vm(f"global_load_dword v{DSK}, v56, s[32:33]", "par")
k(f"""
v_lshrrev_b32 v52, 6, v0
v_and_b32 v{LANE}, 63, v0
v_readfirstlane_b32 s{WV}, v52
""")
if opt("pfx", 0):
    k(f"""
    s_bitcmp1_b32 s2, 2
    s_cbranch_scc1 Lnopfx
    s_xor_b32 s78, s84, {128*8192}
    v_lshl_add_u32 v137, v51, 7, s78
    v_xor_b32 v53, {4*512}, v53
    global_load_dword v138, v137, s[16:17]
    """)
    for i in range(6): k(f"global_load_ushort v138, v53, s[{18+2*i}:{19+2*i}]")
    k.label("Lnopfx")
if opt("pf1", 0):
    k(f"""
    s_mul_i32 s78, s2, 7168
    v_bfe_u32 v137, v0, 1, 6
    v_min_u32 v137, 55, v137
    v_lshl_add_u32 v137, v137, 7, s78
    s_cmp_lt_u32 s{WV}, 2
    s_cselect_b32 s94, s36, s38
    s_cselect_b32 s95, s37, s39
    """)
    k.vm("global_load_dword v138, v137, s[94:95]", "pf1")
k.stamp("iss0")
k(f"""
s_mov_b32 s{SWS}, s42
s_mov_b32 s{SWS+1}, s43
s_mov_b32 s{SWS+2}, 0x10000000
s_mov_b32 s{SWS+3}, 0x20000
s_mov_b32 s{MASK}, 0xffff0000
s_mov_b32 s{ONES}, 0x3f803f80
v_lshlrev_b32 v{L16}, 4, v{LANE}
v_lshlrev_b32 v51, 16, v51
v_lshl_add_u32 v51, v54, 4, v51
v_lshrrev_b32 v58, 4, v{LANE}
v_lshl_add_u32 v133, v52, 2, v58
v_lshlrev_b32 v133, 4, v133
v_lshl_add_u32 v133, v54, 8, v133
v_add_u32 v133, {STG}, v133
v_add_u32 v134, {STG}, v{L16}
v_lshlrev_b32 v135, 4, v58
v_lshrrev_b32 v53, 3, v0
v_lshlrev_b32 v53, 15, v53
v_and_b32 v55, 7, v0
v_lshl_add_u32 v{VHT}, v55, 4, v53
v_mov_b32 v68, -1
v_mov_b32 v69, -1
v_mov_b32 v70, -1
v_mov_b32 v71, -1
s_lshl_b32 s{HST}, s2, 7
s_add_u32 s{HST}, s{HST}, {HT}
s_add_u32 s{HST+1}, s{HST}, 0x100000
s_lshr_b32 s{DT}, s2, 5
s_min_u32 s83, s{DT}, 6
s_and_b32 s78, s2, 1
s_mul_i32 s{FT}, s78, 7
s_add_u32 s{FT}, s{FT}, s83
s_bfe_u32 s81, s2, 0x20003
s_and_b32 s{RG2}, s2, 6
s_lshl_b32 s{RG2}, s{RG2}, 1
s_add_u32 s{RG2}, s{RG2}, s81
s_lshl_b32 s{RG2}, s{RG2}, 1
s_add_u32 s{RG2}, s{RG2}, s78
s_lshl_b32 s{ROT1}, s81, 1
s_add_u32 s{ROT1}, s{ROT1}, s{DT}
s_cmp_ge_u32 s{ROT1}, 7
s_cselect_b32 s84, 7, 0
s_sub_u32 s{ROT2}, s{ROT1}, s84
s_mov_b32 s{SW1}, s36
s_mov_b32 s{SW1+1}, s37
s_mov_b32 s{SW1+2}, {512*1792*2}
s_mov_b32 s{SW1+3}, 0x20000
s_mov_b32 s{SW2}, s38
s_mov_b32 s{SW2+1}, s39
s_mov_b32 s{SW2+2}, {512*1792*2}
s_mov_b32 s{SW2+3}, 0x20000
s_mov_b32 s{SOUT}, s40
s_mov_b32 s{SOUT+1}, s41
v_lshrrev_b32 v53, 2, v{LANE}
v_mul_u32_u24 v{W1V}, 3584, v53
v_lshl_add_u32 v{W1V}, v54, 4, v{W1V}
v_add_u32 v{W1V+1}, {57344-1024}, v{W1V}
v_add_u32 v{W1V+2}, {2*(57344-1024)}, v{W1V}
v_add_u32 v{W1V+3}, {3*(57344-1024)}, v{W1V}
s_lshl_b32 s{RING}, s{WV}, 14
s_add_u32 s{RING+1}, s{RING}, 4096
s_add_u32 s{RING+2}, s{RING}, 8192
s_add_u32 s{RING+3}, s{RING}, 12288
s_lshl_b32 s84, s{FT}, 8
s_lshl_b32 s85, s{WV}, 6
s_add_u32 s84, s84, s85
s_lshr_b32 s85, s{WV}, 1
""")
for g in range(8):
    k(f"s_xor_b32 s78, s85, {g}")
    k(f"s_add_u32 s78, s78, s{ROT1}")
    k(f"s_and_b32 s78, s78, 7")
    k(f"s_mul_i32 s78, s78, {4*57344}")
    k(f"s_add_u32 s{TW1+g}, s78, s84")
bg.avail = ["R0", "R1", "R2", "R3"]
k(f"""
v_lshrrev_b32 v56, 5, v{LANE}
v_lshlrev_b32 v{LP}, 8, v56
v_bfe_u32 v55, v{LANE}, 2, 2
v_lshl_add_u32 v{LP}, v55, 6, v{LP}
v_bfe_u32 v57, v{LANE}, 4, 1
v_lshl_add_u32 v{LP}, v57, 5, v{LP}
v_lshl_add_u32 v{LP}, v54, 3, v{LP}
v_add_u32 v{RD2}, s{RING}, v{LP}
s_and_b32 s83, s{WV}, 1
s_lshl_b32 s78, s83, 11
v_add_u32 v{RD0}, s78, v{RD2}
v_xor_b32 v{RD0+1}, 2048, v{RD0}
v_xor_b32 v{SEL}, v58, v{LANE}
v_and_b32 v{SEL}, 1, v{SEL}
v_add_u32 v{SEL}, -1, v{SEL}
v_and_b32 v{SEL}, s{ONES}, v{SEL}
v_mov_b32 v{SEL+1}, v{SEL}
v_mov_b32 v{SEL+2}, v{SEL}
v_mov_b32 v{SEL+3}, v{SEL}
s_mul_i32 s78, s{WV}, {SCW}
s_add_u32 s78, s78, {SCR}
v_add_u32 v46, s78, v{L16}
v_lshlrev_b32 v47, 4, v53
v_bfe_u32 v48, v{LANE}, 1, 1
v_mul_u32_u24 v48, {SCH}, v48
v_add3_u32 v47, v47, v48, s78
v_and_b32 v59, 1, v0
v_lshl_add_u32 v47, v59, 3, v47
s_lshl_b32 s78, s{WV}, 11
s_add_u32 s78, s78, {EX}
v_add_u32 v48, s78, v{L16}
s_xor_b32 s78, s{WV}, 1
s_lshl_b32 s78, s78, 11
s_add_u32 s78, s78, {EX}
v_add_u32 v49, s78, v{L16}
s_lshl_b32 s79, s83, 8
s_mul_i32 s81, s85, {KCH}
s_add_u32 s81, s81, s79
s_add_u32 s81, s81, {KC}
v_mul_u32_u24 v60, {KCS}, v54
v_add_u32 v55, v55, v58
v_lshl_add_u32 v60, v55, 4, v60
v_add_u32 v{CVA}, s81, v60
s_add_u32 s78, s81, {3*KCS + 48}
v_and_b32 v60, 15, v{LANE}
v_lshl_add_u32 v60, v60, 4, s78
v_lshl_add_u32 v130, v56, 9, v60
v_lshl_add_u32 v130, v57, 3, v130
v_lshl_add_u32 v131, v58, 9, v60
s_mul_i32 s81, s85, {UCH}
s_add_u32 s81, s81, s79
s_add_u32 s81, s81, {UC+16+448}
v_mul_u32_u24 v60, {UCS}, v59
v_lshl_add_u32 v60, v58, 4, v60
v_bfe_u32 v61, v{LANE}, 1, 3
v_lshlrev_b32 v61, 6, v61
v_sub_u32 v60, v60, v61
v_add_u32 v{CVB}, s81, v60
v_lshlrev_b32 v{T16}, 4, v0
""")
k(f"""
s_lshl_b32 s84, s{RBK}, 6
s_mov_b32 s92, 0x3b000000
s_mov_b32 s93, 0x3b000000
""")
k.stamp("setup0")
k.vmwait("ep")
k(f"""
v_add_u32 v74, 1, v74
v_mov_b32 v79, v75
v_readfirstlane_b32 s{TAG}, v74
v_readfirstlane_b32 s{TAG+1}, v75
v_mov_b32 v78, v74
v_mov_b32 v82, v74
v_mov_b32 v83, v75
v_mov_b32 v86, v74
v_mov_b32 v87, v75
v_mov_b32 v67, v74
""")
k.stamp("setup")
k.vmwait("x")
k.stamp("xload")
for j in range(4):
    G = 72 + 4*j
    k(f"v_mov_b32 v{G}, v{16+j}")
    k(f"v_mov_b32 v{G+1}, v{20+j}")
    k(f"s_add_u32 s78, s84, {XT + j*16384}")
    XM = opt("xm", 0)
    if XM == 0: k.vm(f"buffer_store_dwordx4 {vr(G,4)}, v51, {srd(SWS)}, s78 offen sc1", "xtst")
    elif XM == 2: k.vm(f"buffer_store_dwordx4 {vr(G,4)}, v51, {srd(SWS)}, s78 offen", "xtst")
    elif XM == 3:
        k(f"s_lshl_b32 s78, s{RBK}, 14\ns_add_u32 s78, s78, {j*4096}")
        k.vm(f"buffer_store_dwordx4 {vr(G,4)}, v{T16}, {srd(SWS)}, s78 offen sc1", "xtst")
    elif XM == 4: k.vm(f"buffer_store_dwordx4 {vr(G,4)}, v51, {srd(SWS)}, s78 offen sc0 sc1", "xtst")
    elif XM == 5: k.vm(f"buffer_store_dwordx4 {vr(G,4)}, v51, {srd(SWS)}, s78 offen sc1 nt", "xtst")
k.stamp("xst")
S = 56
for r in range(2):
    k(f"v_dot2_f32_bf16 v{S+r}, v{16+4*r}, s{ONES}, 0")
    k(f"v_dot2_f32_bf16 v{S+2+r}, v{16+4*r}, v{16+4*r}, 0")
for i in range(1, 4):
    for r in range(2):
        k(f"v_dot2_f32_bf16 v{S+r}, v{16+4*r+i}, s{ONES}, v{S+r}")
        k(f"v_dot2_f32_bf16 v{S+2+r}, v{16+4*r+i}, v{16+4*r+i}, v{S+2+r}")
k("s_nop 2")
for sh in (4, 8):
    for r in range(4):
        k(f"v_add_f32_dpp v{S+r}, v{S+r}, v{S+r} row_shr:{sh} row_mask:0xf bank_mask:0xf bound_ctrl:0")
k("s_mov_b32 exec_lo, 0xf000f000\ns_mov_b32 exec_hi, 0xf000f000")
k.ds("ds_write_b128 v133, v[56:59]")
k("s_mov_b64 exec, -1")
k.dswait()
k("s_barrier")
k(f"""
s_cmp_lg_u32 s{WV}, 0
s_cbranch_scc1 Lnopub
ds_read_b128 v[56:59], v134
s_add_u32 s78, s84, {ST}
s_waitcnt lgkmcnt(0)
""")
for sh in (1, 2, 4, 8):
    for r in range(4):
        k(f"v_add_f32_dpp v{S+r}, v{S+r}, v{S+r} row_shr:{sh} row_mask:0xf bank_mask:0xf bound_ctrl:0")
k(f"""
v_pk_mul_f32 v[56:57], v[56:57], s[92:93]
v_pk_mul_f32 v[58:59], v[58:59], s[92:93]
v_pk_fma_f32 v[58:59], v[56:57], v[56:57], v[58:59] neg_lo:[1,0,0] neg_hi:[1,0,0]
v_cvt_pk_bf16_f32 v66, v56, v57
v_cvt_pk_bf16_f32 v60, v58, v59
v_pk_max_i16 v60, v60, 0
""")
unpack(58, 60)
k("v_add_f32 v58, 0x3727c5ac, v58\nv_add_f32 v59, 0x3727c5ac, v59\nv_cvt_pk_bf16_f32 v60, v58, v59")
unpack(58, 60)
k("v_sqrt_f32 v58, v58\nv_sqrt_f32 v59, v59\ns_nop 0\nv_cvt_pk_bf16_f32 v60, v58, v59")
unpack(58, 60)
k(f"""
v_rcp_f32 v64, v58
v_rcp_f32 v65, v59
s_mov_b32 exec_lo, 0x80008000
s_mov_b32 exec_hi, 0x80008000
buffer_store_dwordx4 v[64:67], v135, {srd(SWS)}, s78 offen sc1
s_mov_b64 exec, -1
""")
k.label("Lnopub")
k.stamp("pub")
k.vmwait("par")
k.stamp("par")
k.t += 3000; k.vdone = [k.t + opt('ack', 1200)]; T_PUB = k.t
def clrh():
    k.vm(f"buffer_store_dwordx4 v[68:71], v{VHT}, {srd(SWS)}, s{HST} offen sc1", "clrh")
    k.vm(f"buffer_store_dwordx4 v[68:71], v{VHT}, {srd(SWS)}, s{HST+1} offen sc1", "clrh")
CLRAT = opt("clrat", 0)
if CLRAT == 0: clrh()
PK = [56, 60, 100, 104]
FR = 160
def kmf(acc, ta, tb_, s):
    c = "0" if s == 0 else vr(acc,4)
    return f"v_mfma_f32_16x16x32_bf16 {vr(acc,4)}, {ar(FR+16*ta+4*s,4)}, {ar(FR+16*tb_+4*s,4)}, {c}"
KA, KB_ = 32, 152
with k.valu(opt("fk", 2)):
    k(f"""
    s_lshl_b32 s78, s85, 4
    v_lshrrev_b32 v136, s78, v136
    v_lshlrev_b32 v136, 16, v136
    v_mul_f32 v136, 0x3fb8aa3b, v136
    v_exp_f32 v136, v136
    """)
    for i in range(6):
        k(f"v_lshlrev_b32 v{40+i}, 16, v{40+i}")
    k("v_cvt_pk_bf16_f32 v136, v136, v136\nv_lshlrev_b32 v136, 16, v136")
    k(f"""
    s_mov_b32 s78, 0x3fb8aa3b
    s_mov_b32 s79, 0x3e22f983
    v_pk_mul_f32 v[40:41], v[40:41], v[136:137] op_sel_hi:[1,0]
    v_pk_mul_f32 v[42:43], v[42:43], v[136:137] op_sel_hi:[1,0]
    v_pk_mul_f32 v[40:41], v[40:41], s[78:79]
    """)
    WC = 52
    cmul(WC, 44, 42, negim=True)
    E = {}
    free = list(range(72, 100, 2))
    def newE(l):
        E[l] = free.pop(0); return E[l]
    def relE(*ls):
        for l in ls: free.append(E.pop(l))
    for l in (8, 128, 1): newE(l)
    k(f"v_mul_f32 v16, {f2h(8)}, v40\nv_mul_f32 v17, {f2h(8)}, v41\nv_mul_f32 v18, {f2h(128)}, v40\nv_mul_f32 v19, {f2h(128)}, v41")
    k(f"v_fract_f32 v17, v17\nv_fract_f32 v19, v19\nv_fract_f32 v41, v41")
    for l, a_ in ((8,16),(128,18),(1,40)):
        k(f"v_cos_f32 v{E[l]}, v{a_+1}\nv_sin_f32 v{E[l]+1}, v{a_+1}\nv_exp_f32 v{a_}, v{a_}")
    for l, a_ in ((8,16),(128,18),(1,40)):
        k(f"v_pk_mul_f32 {vr(E[l],2)}, {vr(E[l],2)}, {vr(a_,2)} op_sel_hi:[1,0]")
    pend_reads = []
    def tile_reads(t):
        for s in range(4):
            for rd in range(2):
                pend_reads.append((f"ds_read_b64_tr_b16 {ar(FR+16*t+4*s+2*rd,2)}, v47 offset:{512*s+256*rd}", f"kf{t}"))
    def flush_reads(n=99):
        while pend_reads and n > 0:
            k.ds(*pend_reads.pop(0)); n -= 1
    _cmulN = cmulN
    def cmulN(lst, conj=False):
        _cmulN(lst, conj); flush_reads(len(lst))
    pks = [0]
    def pack8(vals, hf, extra=None):
        for ri in range(2):
            P = PK[pks[0] % 4]; pks[0] += 1
            for i in range(4):
                k(f"v_cvt_pk_bf16_f32 v{P+i}, {vals[2*i][ri]}, {vals[2*i+1][ri]}")
                if extra and (i & 1): k(extra.pop(0))
            flush_reads()
            k.ds(f"ds_write_b128 v46, {vr(P,4)} offset:{hf*SCH+1024*ri}")
            k.adv(12)
    cmul(54, WC, E[128], conj=True)
    newE(16); cmul(E[16], E[8], E[8])
    k(f"""
    s_bitcmp1_b32 s{WV}, 0
    s_cselect_b64 vcc, -1, 0
    v_cndmask_b32 v16, v{WC}, v54, vcc
    v_cndmask_b32 v17, v{WC+1}, v55, vcc
    v_cndmask_b32 v44, v54, v{WC}, vcc
    v_cndmask_b32 v45, v55, v{WC+1}, vcc
    """)
    GB = 16
    for t in range(2):
        if t == 1:
            k(f"v_mov_b32 v{GB}, v44\nv_mov_b32 v{GB+1}, v45")
        cmul(GB+2, GB, E[8], conj=True)
        for hf in range(2):
            if hf == 1:
                cmulN([(GB, GB+12, E[16]), (GB+2, GB+14, E[16])], conj=True)
            for i in range(1, 4):
                cmulN([(GB+4*i, GB+4*i-4, E[16]), (GB+4*i+2, GB+4*i-2, E[16])], conj=True)
            pack8([(f"v{GB+2*i}", f"v{GB+2*i+1}") for i in range(8)], hf)
        tile_reads(t)
    relE(16)
    free += [16,18,20,22,24,26,28,30,40,42,44]
    def mk(*specs):
        lst = []
        for (l, a_, b_) in specs:
            assert a_ + b_ == l
            lst.append((newE(l), E[a_], E[b_]))
        cmulN(lst)
    def ev(l):
        return ("1.0", "0") if l == 0 else (f"v{E[l]}", f"v{E[l]+1}")
    mk((2,1,1),(256,128,128)); mk((3,2,1),(4,2,2),(512,256,256)); mk((5,4,1),(6,4,2),(7,4,3))
    pack8([ev(l) for l in range(8)], 0)
    relE(1,3,5,7,128)
    mk((258,256,2),(260,256,4),(262,256,6),(264,256,8))
    pack8([ev(l) for l in (256,256,258,260,260,260,262,264)], 1)
    tile_reads(2)
    relE(2,6,258,260,262,264)
    mk((516,512,4),(520,512,8),(1024,512,512),(768,512,256)); mk((1032,1024,8),(1280,1024,256),(1536,1024,512),(1792,1024,768)); mk((1288,1280,8),(772,768,4),(776,768,8))
    mk((1544,1536,8),(1800,1792,8))
    k.dswait("kf2")
    a0 = [kmf(acc, 2, tb_, s) for s in range(4) for (acc, tb_) in ((KA,1),(KB_,0))]
    pack8([ev(l) for l in (512,516,1024,1032,516,520,1280,1288)], 0, a0)
    pack8([ev(l) for l in (768,772,1536,1544,772,776,1792,1800)], 1, a0)
    tile_reads(3); flush_reads()
k.stamp("kchain")
hiA(L(f"""
v_lshrrev_b32 v132, 7, v0
v_mul_u32_u24 v132, {KCH}, v132
v_and_b32 v50, 127, v0
v_lshl_add_u32 v132, v50, 5, v132
v_add_u32 v132, {KC+40}, v132
v_bfe_u32 v50, v0, 6, 1
v_mul_u32_u24 v50, {UCH}, v50
v_bfe_u32 v51, v0, 5, 1
v_mul_u32_u24 v51, {UCS}, v51
v_and_b32 v52, 31, v0
v_lshlrev_b32 v53, 4, v52
v_add3_u32 v50, v50, v51, v53
v_add_u32 v50, {UC+16+4080}, v50
v_lshrrev_b32 v52, 2, v52
v_mul_u32_u24 v52, {KCS}, v52
v_and_b32 v119, 3, v0
v_min_u32 v53, 2, v119
v_lshl_add_u32 v52, v53, 4, v52
v_add_u32 v52, {KC}, v52
v_cmp_gt_u32 vcc, 128, v0
v_mov_b32 v120, 0
v_mov_b32 v121, 0
v_cndmask_b32 v50, v52, v50, vcc
v_mov_b32 v122, 0
v_mov_b32 v123, 0
"""))
hiD("ds_write_b128 v50, v[120:123]", "zp")
NZ = len(bg.hi)
hiA(L(f"""
v_bfe_u32 v51, v{LANE}, 2, 3
v_lshlrev_b32 v{W2V}, 10, v51
v_lshrrev_b32 v51, 5, v{LANE}
v_lshl_add_u32 v{W2V}, v51, 6, v{W2V}
v_lshl_add_u32 v{W2V}, v119, 4, v{W2V}
v_add_u32 v{W2V+1}, 7168, v{W2V}
v_add_u32 v{W2V+2}, {2*7168}, v{W2V}
v_add_u32 v{W2V+3}, {3*7168}, v{W2V}
s_mul_i32 s98, s{WV}, {28*16384}
s_lshl_b32 s99, s{DT}, 7
s_add_u32 s98, s98, s99
s_lshl_b32 s99, s{ROT2}, 16
s_add_u32 s{TW2}, s99, s98
s_add_u32 s99, s98, {7*65536}
"""))
for g4 in range(7):
    if g4: hiA([f"s_add_u32 s{TW2+2*g4}, s{TW2+2*g4-2}, 65536\ns_cmp_ge_u32 s{TW2+2*g4}, s99\ns_cselect_b32 s{TW2+2*g4}, s98, s{TW2+2*g4}"])
    hiA([f"s_add_u32 s{TW2+2*g4+1}, s{TW2+2*g4}, 32768"])
hiF(lambda: setattr(bg, "w2ok", True))
hiA(L(f"""
v_lshlrev_b32 v{VXC}, 2, v0
v_sub_u32 v{VU}, {UC+16+1012}, v{VXC}
v_add_u32 v{VU2}, {UCS+8}, v{VU}
v_add_u32 v{VXC}, {XC}, v{VXC}
s_lshl_b32 s98, s2, 6
s_lshl_b32 s99, s{WV}, 2
s_add_u32 s98, s98, s99
s_add_u32 s98, s98, {CF}
v_mov_b32 v128, s98
v_mov_b32 v129, s{TAG}
s_mov_b32 s96, 0x05040100
s_mov_b32 s101, 0x07060302
"""))
def poll_lines(P, its):
    out = []
    for n, it in enumerate(its):
        out.append((f"s_lshl_b32 s78, s2, 14\ns_add_u32 s78, s78, {XT + it*4096}", f"buffer_load_dwordx4 {vr(P+8*n,4)}, v{T16}, {srd(SWS)}, s78 offen sc1"))
        out.append((f"s_mov_b32 s78, {ST + it*4096}", f"buffer_load_dwordx4 {vr(P+8*n+4,4)}, v{T16}, {srd(SWS)}, s78 offen sc1"))
    return out
def poll_issue(lines, tag):
    for pre, ins in lines:
        k(pre); k.vm(ins, tag); bg.tl[tag] = k.model_load(1100)
def tagchk(regs_lo, regs_hi, T):
    ls = [f"v_xor_b32 v{T}, s{TAG}, v{regs_lo[0]}"]
    ls += [f"v_bitop3_b32 v{T}, v{T}, v{r}, s{TAG} bitop3:0xf6" for r in regs_lo[1:]]
    ls += [f"v_bitop3_b32 v{T}, v{T}, v{r}, s{TAG+1} bitop3:0xf6" for r in regs_hi]
    ls += [f"v_cmp_ne_u32 vcc, 0, v{T}"]
    return ls
def poll_branch(tag, lines, chk, lane):
    Lb = f"Lp{tag}"
    k(chk[-1])
    k(f"s_cbranch_vccnz {Lb}")
    k.label(f"{Lb}_ret")
    def stub():
        k.label(Lb)
        k(f"s_add_u32 s97, s97, 1\ns_cmp_ge_u32 s97, {SPIN}\ns_cbranch_scc1 {Lb}_ret")
        for pre, ins in lines: k(pre); k(ins)
        k("s_waitcnt vmcnt(0)")
        for l in chk: k(l)
        k(f"s_cbranch_vccnz {Lb}\ns_branch {Lb}_ret")
    stubs.append(stub)
    k.note(97, lane)
def ln_lines(P, its, T, packed):
    out = []
    for n, it in enumerate(its):
        X = P + 8*n; Gr = X + 4
        O = T + 6 + 4*n
        A = lambda ls: out.extend(("A", l) for l in ls)
        A([f"v_perm_b32 v{O}, v{X+1}, v{X}, s96", f"v_perm_b32 v{O+1}, v{X+1}, v{X}, s101"])
        out.append(("D", f"ds_write2st64_b32 v{VXC}, v{O}, v{O+1} offset0:{4*it} offset1:{4*it+16}"))
        A(unp(T, X) + unp(T+2, X+1) + unp(T+4, Gr+2))
        for r in range(2):
            if packed: A([f"v_pk_add_f32 {vr(T+2*r,2)}, {vr(T+2*r,2)}, {vr(T+4,2)} op_sel:[0,{r}] op_sel_hi:[1,{r}] neg_lo:[0,1] neg_hi:[0,1]"])
            else: A([f"v_sub_f32 v{T+2*r}, v{T+2*r}, v{T+4+r}", f"v_sub_f32 v{T+2*r+1}, v{T+2*r+1}, v{T+4+r}"])
        A([f"v_cvt_pk_bf16_f32 v{T+4}, v{T}, v{T+1}", f"v_cvt_pk_bf16_f32 v{T+5}, v{T+2}, v{T+3}"] + unp(T, T+4) + unp(T+2, T+5))
        for r in range(2):
            if packed: A([f"v_pk_mul_f32 {vr(T+2*r,2)}, {vr(T+2*r,2)}, {vr(Gr,2)} op_sel:[0,{r}] op_sel_hi:[1,{r}]"])
            else: A([f"v_mul_f32 v{T+2*r}, v{T+2*r}, v{Gr+r}", f"v_mul_f32 v{T+2*r+1}, v{T+2*r+1}, v{Gr+r}"])
        A([f"v_cvt_pk_bf16_f32 v{O+2}, v{T+2}, v{T}", f"v_cvt_pk_bf16_f32 v{O+3}, v{T+3}, v{T+1}"])
        for vu in (VU, VU2):
            out.append(("D", f"ds_write2st64_b32 v{vu}, v{O+2}, v{O+3} offset0:{4*(3-it)} offset1:{4*(3-it)+UCH//256}"))
    return out
PA, PB_ = 72, 92
LA, LB = poll_lines(PA, (0,1)), poll_lines(PB_, (2,3))
k("s_mov_b32 s97, 0")
PAAT = opt("paat", 0)
if PAAT == 0: poll_issue(LA, "A")
k("""
s_mov_b32 s92, 0xffff0000
s_mov_b32 s93, 0xffff0000
s_mov_b32 s94, 0xaaaaaaaa
s_mov_b32 s95, 0xaaaaaaaa
""")
k.ds(f"ds_write_b128 v48, {vr(KA,4)}")
idle(80)
k.dswait("kf3")
for s in range(4): k(kmf(KA+4, 3, 1, s)); k.slack()
for s in range(4): k(kmf(KB_+4, 3, 0, s)); k.slack()
k("s_nop 3")
k.ds(f"ds_write_b128 v48, {vr(KA+4,4)} offset:1024", "exw")
idle(80)
k.dswait("exw")
k("s_barrier")
k.stamp("kbar1")
k.ds("ds_read_b128 v[24:27], v49", "ex")
k.ds("ds_read_b128 v[28:31], v49 offset:1024", "ex")
if PAAT == 1: poll_issue(LA, "A")
idle(100)
k.dswait("ex")
k.mode = "valu"; k.every = 1000
k(f"""
v_pk_add_f32 v[16:17], v[{KB_}:{KB_+1}], v[24:25]
v_pk_add_f32 v[18:19], v[{KB_+2}:{KB_+3}], v[26:27]
v_pk_add_f32 v[20:21], v[{KB_+4}:{KB_+5}], v[28:29]
v_pk_add_f32 v[22:23], v[{KB_+6}:{KB_+7}], v[30:31]
v_cvt_pk_bf16_f32 v24, v16, v17
v_cvt_pk_bf16_f32 v25, v18, v19
v_cndmask_b32 v16, v20, v21, s[92:93]
v_cndmask_b32 v17, v22, v23, s[94:95]
v_cvt_pk_bf16_f32 v26, v20, v20
v_cvt_pk_bf16_f32 v27, v16, v21
v_cvt_pk_bf16_f32 v28, v22, v22
v_cvt_pk_bf16_f32 v29, v22, v22
v_cvt_pk_bf16_f32 v30, v17, v23
v_cvt_pk_bf16_f32 v31, v23, v23
""")
k.ds("ds_write_b64 v130, v[24:25]", "tw")
k.ds("ds_write_b64 v130, v[26:27] offset:1024", "tw")
k.ds("ds_write_b128 v131, v[28:31] offset:2048", "tw")
assert "ds_write_b128 v50, v[120:123]" in "\n".join(k.lines), "zero pad must be written before kbar2"
idle(100)
k.dswait("tw")
k("s_barrier")
k.stamp("kbar2")
D = 14
k.ds(f"ds_read_b64 v[16:17], v132 offset:{3*KCS}", "s2")
k.ds(f"ds_read_b128 v[18:21], v132 offset:{3*KCS+8}", "s2")
k.ds(f"ds_read_b128 v[22:25], v132 offset:{3*KCS+24}", "s2")
idle(100)
k.dswait("s2")
for i in range(8):
    k(f"v_alignbit_b32 v{28+i}, v{D+4+i}, v{D+3+i}, 16")
k.ds(f"ds_write_b128 v132, v[28:31] offset:{2*KCS+8}")
k.ds(f"ds_write_b128 v132, v[32:35] offset:{2*KCS+24}")
for i in range(8):
    k(f"v_alignbit_b32 v{36+i}, v{D+3+i}, v{D+2+i}, 16")
k.ds(f"ds_write_b128 v132, v[36:39] offset:{8}")
k.ds(f"ds_write_b128 v132, v[40:43] offset:{24}")
for i in range(4):
    k(f"v_pk_mov_b32 {vr(56+2*i,2)}, {vr(D+2+2*i,2)}, {vr(D+4+2*i,2)} op_sel:[1,0]")
k.ds(f"ds_write_b128 v132, v[56:59] offset:{KCS+8}")
k.ds(f"ds_write_b128 v132, v[60:63] offset:{KCS+24}")
bg.drain_hi()
k.stamp("kdone")
idle(max(0, bg.tl["A"] - k.t))
k.vmwait("A")
chkA = tagchk([PA+2, PA+7, PA+10, PA+15], [PA+3, PA+11], 88)
for l in chkA[:-1]: k(l)
k.mode = None
poll_branch("A", LA, chkA, 56)
k.stamp("syncA")
poll_issue(LB, "B")
if CLRAT == 1: clrh()
def cf_pub():
    k.vmwait("clrh")
    k.vm(f"buffer_store_dword v129, v128, {srd(SWS)}, 0 offen sc1", "cf")
if CLRAT == 0: cf_pub()
with k.valu(1000):
    for ty, l in ln_lines(PA, (0,1), 16, True):
        k(l) if ty == "A" else k.ds(l, "uw")
hiA(L(f"""
s_lshl_b32 s{SLC}, s{WV}, 12
s_add_u32 s{SLC}, s{SLC}, {RC}
v_add_u32 v{PW}, s{SLC}, v{L16}
v_lshrrev_b32 v{PR}, 6, v0
v_lshlrev_b32 v{PR}, 10, v{PR}
v_lshl_add_u32 v{PR}, v119, 8, v{PR}
v_bfe_u32 v120, v0, 3, 3
v_lshl_add_u32 v{PR}, v120, 5, v{PR}
v_bfe_u32 v120, v0, 2, 1
v_lshl_add_u32 v{PR}, v120, 13, v{PR}
v_add_u32 v{PR}, {CP}, v{PR}
v_lshrrev_b32 v121, 3, v0
v_lshlrev_b32 v121, 6, v121
v_lshl_add_u32 v121, v119, 4, v121
v_lshl_add_u32 v{XR}, v120, 12, v121
v_add_u32 v{XR}, {XC}, v{XR}
v_mul_u32_u24 v{UR}, {UCH}, v120
v_sub_u32 v{UR}, v{UR}, v121
v_add_u32 v{UR}, {UC + UCS + 16 + 2*2040 - 2048}, v{UR}
v_lshlrev_b32 v120, 4, v120
v_lshrrev_b32 v{DSK}, v120, v{DSK}
v_lshlrev_b32 v{DSK}, 16, v{DSK}
"""))
idle(100)
k.dswait("uw")
k("s_barrier")
k.stamp("ubarA")
ACC0, ACC1 = 60, 76
def cfr(buf, slot): return vr(16+4*slot, 4) if buf == 0 else ar(160+4*slot, 4)
cbuf = [0]
def conv_part(name, As, Bs, lo, acc, first, hooks={}, nxtpart=None, pre=True, minpush=0):
    order = []
    for i in range(max(len(As), len(Bs))):
        if i < len(As): order.append(("A", As[i]))
        if i < len(Bs): order.append(("B", Bs[i]))
    slot = {f: i for i, f in enumerate(order)}
    pairs = [(a_, c_) for a_ in Bs for c_ in As if lo <= a_ + c_ <= lo + 3]
    pairs.sort(key=lambda p: (max(slot[("B",p[0])], slot[("A",p[1])]), p[0]+p[1]))
    def reads(rp, buf):
        return [((f"ds_read_b128 {cfr(buf,slot[f])}, v{CVA} offset:{512*f[1] + 64*rp}" if f[0] == "A" else
                  f"ds_read_b128 {cfr(buf,slot[f])}, v{CVB} offset:{512*(7-f[1]) + 64*rp}"), f"{name}{rp}_{slot[f]}") for f in order]
    def run():
        if pre:
            for ins, tg in reads(0, cbuf[0]): k.ds(ins, tg)
            k.adv(60)
        for rp in range(4):
            if rp in hooks: hooks[rp]()
            buf = cbuf[0]
            nxt_ = reads(rp+1, buf^1) if rp < 3 else (nxtpart(buf^1) if nxtpart else [])
            for (a_, c_) in pairs:
                m = max(slot[("B",a_)], slot[("A",c_)])
                k.dswait(f"{name}{rp}_{m}")
                n = a_ + c_ - lo
                cc = vr(acc+4*n,4) if n in first else "0"
                first.add(n)
                k(f"v_mfma_f32_16x16x32_bf16 {vr(acc+4*n,4)}, {cfr(buf,slot[('A',c_)])}, {cfr(buf,slot[('B',a_)])}, {cc}")
                if nxt_:
                    ins, tg = nxt_.pop(0); k.ds(ins, tg)
                if minpush: bg.push(minpush)
                k.slack(maxD=opt("cmaxd", 2))
            for ins, tg in nxt_: k.ds(ins, tg)
            cbuf[0] ^= 1
    return run, (lambda buf: reads(0, buf))
def h_setup():
    ls = [f"s_lshr_b32 s79, s{WV}, 1", f"s_xor_b32 s81, s{RG2}, s79", "s_lshl_b32 s81, s81, 15", f"s_add_u32 s81, s81, {HT}",
          f"s_and_b32 s83, s{WV}, 1", f"s_add_u32 s83, s83, s{ROT1}"]
    for c in range(4):
        ls += [f"s_add_u32 s79, s83, {2*c}", "s_and_b32 s79, s79, 7", "s_lshl_b32 s79, s79, 12", f"s_add_u32 s{92+c}, s79, s81"]
    return ls
def h_first(hf, c):
    if hf == 0: k(f"s_mov_b32 m0, s{RING+c}\ns_mov_b32 s100, s{92+c}")
    else: k(f"s_or_b32 m0, s{RING+c}, {RB}\ns_add_u32 s100, s{92+c}, 0x100000")
def h_ins(i): return f"buffer_load_dwordx4 v{L16}, {srd(SWS)}, s100 offen offset:{1024*i} sc1 lds"
LH = opt("lh", 1000)
def h_queue(hf):
    for c in range(4):
        sn = ("R" if hf == 0 else "B") + str(c)
        for i in range(4):
            def f(c=c, i=i, sn=sn):
                if i == 0:
                    bg.free_slots([sn])
                    if sn in bg.lasttag: k.dswait(bg.lasttag[sn])
                    h_first(hf, c)
                k.vm(h_ins(i), f"h{hf}_{c}")
            rdy = (lambda sn=sn: bg.busy.get(sn, 0) is not None and k.t >= bg.busy.get(sn, 0)) if i == 0 else None
            bg.hv.append((f, LH if c == 0 else LHIT, 150 if c == 0 else 76, i < 3, rdy))
TP = 130
def epi0_pre():
    hiD(f"ds_read_b128 {vr(TP,4)}, v{UR} offset:2048", "ux")
    hiD(f"ds_read_b128 {vr(TP+4,4)}, v{XR}", "ux")
    hiW("ux", 120)
    for i in range(4):
        hiA(unp(120, TP+3-i) + [f"v_mul_f32 v120, v120, v{DSK}", f"v_mul_f32 v121, v121, v{DSK}", f"v_cvt_pk_bf16_f32 v{TP+3-i}, v121, v120"])
def epi0_post():
    for n in range(4): hiD(f"ds_write_b128 v{PW}, {vr(ACC0+4*n,4)} offset:{1024*n}", "cw")
    hiW("cw", 130)
    hiF(lambda: (k("s_barrier"), k.adv(-30)))
    for i, off in enumerate((0, 16, 4096, 4112)): hiD(f"ds_read_b128 {vr(ACC0+4*i,4)}, v{PR} offset:{off}", "pp")
    hiW("pp", 130)
    for i in range(4):
        a_ = ACC0 + 2*i
        hiA([f"v_add_f32 v{a_}, v{a_}, v{a_+8}", f"v_add_f32 v{a_+1}, v{a_+1}, v{a_+9}"] + unp(a_+8, TP+3-i) +
            [f"v_add_f32 v{a_}, v{a_}, v{a_+8}", f"v_add_f32 v{a_+1}, v{a_+1}, v{a_+9}", f"v_cvt_pk_bf16_f32 v{a_}, v{a_}, v{a_+1}"] + unp(a_, a_) + unp(a_+8, TP+4+i) +
            [f"v_add_f32 v{a_}, v{a_}, v{a_+8}", f"v_add_f32 v{a_+1}, v{a_+1}, v{a_+9}", f"v_cvt_pk_bf16_f32 v{120+i}, v{a_}, v{a_+1}"])
    hiF(lambda: (k.vm(f"buffer_store_dwordx4 v[120:123], v{VHT}, {srd(SWS)}, s{HST} offen sc1", "hst0"), k.stamp("hst0")))
LC = [(f"s_mov_b32 s78, {CF}\nv_lshlrev_b32 v138, 6, v0", f"buffer_load_dwordx4 {vr(TP,4)}, v138, {srd(SWS)}, s78 offen sc1")]
def pollB():
    if CLRAT == 1: hiF(cf_pub)
    hiF(lambda: k.vmwait("B"))
    chk = tagchk([PB_+2, PB_+7, PB_+10, PB_+15], [PB_+3, PB_+11], ACC0)
    hiA(chk[:-1])
    hiF(lambda: poll_branch("B", LB, chk, 57))
    for ty, l in ln_lines(PB_, (2,3), ACC0, False):
        hiA([l]) if ty == "A" else hiD(l, "uw")
def hk1a0():
    k("s_nop 3")
    epi0_post(); pollB()
def hk1a3():
    bg.drain_hi()
    poll_issue(LC, "C")
f0, f1 = set(), set()
run1b, rd1b = conv_part("c", [0,1,2,3], [4,5,6,7], 4, ACC1, f1, {}, pre=True)
run1a, rd1a = conv_part("b", [4,3,5,2,6,1,7], [0,1,2,3], 4, ACC1, f1, {0: hk1a0, 3: hk1a3}, pre=False, minpush=opt("mp1a", 2))
run0, _ = conv_part("a", [0,1,2,3], [0,1,2,3], 0, ACC0, f0, {1: epi0_pre}, nxtpart=rd1a, minpush=1)
run0()
bg.drain_hi()
k.stamp("conv0")
run1a()
k.dswait("uw")
k("s_barrier")
k.stamp("conv1a")
k(f"""
s_or_b32 s78, s2, s{WV}
s_cmp_lg_u32 s78, 0
s_cbranch_scc0 Lep
""")
k.label("Lep_ret")
def ep_stub():
    k.label("Lep")
    k(f"v_mov_b32 v120, s{TAG}\nv_mov_b32 v121, {EP}\nbuffer_store_dword v120, v121, {srd(SWS)}, 0 offen\ns_branch Lep_ret")
stubs.append(ep_stub)
AXr, AYr, BF, SA0, SA1, EO, HV, HCK, XW, XRd, SV = 16, 48, 80, 104, 124, 108, 116, 132, 133, 134, 14
hiA(h_setup())
hiD(f"ds_read_b128 v[92:95], v{UR}", "ux")
hiD(f"ds_read_b128 v[96:99], v{XR} offset:2048", "ux")
hiW("ux", 120)
for i in range(4):
    hiA(unp(120, 95-i) + [f"v_mul_f32 v120, v120, v{DSK}", f"v_mul_f32 v121, v121, v{DSK}", f"v_cvt_pk_bf16_f32 v122, v121, v120"] + unp(ACC0+2*i, 122) + unp(ACC0+8+2*i, 96+i))
def chkC():
    k.vmwait("C")
    chk = tagchk([TP, TP+1, TP+2, TP+3], [], 120)
    for l in chk[:-1]: k(l)
    poll_branch("C", LC, chk, 58)
hiF(chkC)
bg.need(lambda g: g[0] == 1, issue_only=True)
if opt("ringstop", 1): bg.avail = []
run1b()
bg.drain_hi()
k.stamp("conv1b")
bg.avail = []
k("s_nop 3")
for n in range(4):
    k.ds(f"ds_write_b128 v{PW}, {vr(ACC1+4*n,4)} offset:{CPH + 1024*n}", "cw")
bg.hiagpr_ok = True
idle(130)
k.dswait("cw")
k("s_barrier")
h_queue(0)
for i, off in enumerate((0, 16, 4096, 4112)): k.ds(f"ds_read_b128 {vr(16+4*i,4)}, v{PR} offset:{CPH+off}", "pp")
idle(130)
k.dswait("pp")
with k.valu(1000):
    for i in range(4):
        k(f"v_pk_add_f32 {vr(16+2*i,2)}, {vr(16+2*i,2)}, {vr(24+2*i,2)}")
        k(f"v_pk_add_f32 {vr(16+2*i,2)}, {vr(16+2*i,2)}, {vr(ACC0+2*i,2)}")
        k(f"v_cvt_pk_bf16_f32 v34, v{16+2*i}, v{17+2*i}")
        unpack(32, 34)
        k(f"v_pk_add_f32 v[32:33], v[32:33], {vr(ACC0+8+2*i,2)}")
        k(f"v_cvt_pk_bf16_f32 v{36+i}, v32, v33")
    k.vm(f"buffer_store_dwordx4 v[36:39], v{VHT}, {srd(SWS)}, s{HST+1} offen sc1", "hst1")
k.stamp("cepi1")
with k.valu(2):
    k(f"""
    s_mov_b32 s91, 0
    s_mov_b32 s70, 0xffff0000
    s_mov_b32 s71, 0xffff0000
    s_and_b32 s78, s{WV}, 1
    s_lshl_b32 s78, s78, 11
    s_lshr_b32 s79, s{WV}, 1
    s_lshl_b32 s79, s79, 14
    s_add_u32 s78, s78, s79
    v_add_u32 v{AX}, s78, v{LP}
    v_xor_b32 v{AX+1}, 2048, v{AX}
    v_xor_b32 v{AX+2}, 16384, v{AX}
    v_xor_b32 v{AX+3}, {2048+16384}, v{AX}
    v_add_u32 v{HCK}, s{RING}, v{L16}
    v_lshlrev_b32 v{XRd}, 3, v{LANE}
    v_add_u32 v{XRd}, {G1X}, v{XRd}
    s_lshl_b32 s78, s{WV}, 9
    v_add_u32 v{XW}, s78, v{XRd}
    s_add_u32 s{SLC+1}, s{SLC}, 16384
    s_lshl_b32 s{SLC+2}, s{WV}, 13
    s_add_u32 s{SLC+2}, s{SLC+2}, {RA+32768}
    s_add_u32 s{SLC+3}, s{SLC+2}, 4096
    v_add_u32 v{RDC}, s{SLC}, v{LP}
    v_add_u32 v{RDU}, s{SLC+2}, v{LP}
    v_add_u32 v{RDB}, {RB}, v{RD2}
    s_lshl_b32 s78, s{FT}, 13
    s_lshl_b32 s79, s{WV}, 11
    s_add_u32 s78, s78, s79
    s_add_u32 s78, s78, {H1F}
    s_mul_i32 s{H1B}, s{RG2}, 114688
    s_add_u32 s{H1B}, s{H1B}, s78
    s_xor_b32 s79, s{RG2}, 1
    s_mul_i32 s{HB1}, s79, 114688
    s_add_u32 s{HB1}, s{HB1}, s78
    s_mov_b32 s{SH1}, s42
    s_mov_b32 s{SH1+1}, s43
    s_mov_b32 s{SH1+3}, 0x20000
    s_mov_b32 s{SOUT+2}, 0x200000
    s_mov_b32 s{SOUT+3}, 0x20000
    v_xor_b32 v{SG}, s{TAG}, v0
    v_and_b32 v{SG}, 1, v{SG}
    v_mul_u32_u24 v{SG}, 0x10001, v{SG}
    v_lshlrev_b32 v{SG}, 15, v{SG}
    v_mov_b32 v{BX+2}, 0
    v_mov_b32 v{BX+3}, 0
    v_mov_b32 v{BX+6}, 0
    v_mov_b32 v{BX+7}, 0
    """)
k(f"s_cmp_lt_u32 s{DT}, 7\ns_cselect_b32 s{SH1+2}, 0x10000000, 0")
bg.need(lambda g: g[0] == 1)
bg.finish_cs()
hiA(L(f"""
s_nop 7
v_cndmask_b32 v136, v{CSA}, v{CSA+1}, s[70:71]
v_cmp_gt_u32 vcc, 32, v{LANE}
v_mov_b32 v{AE+2}, 0
v_mov_b32 v{AE+3}, 0
v_cndmask_b32 v136, 0, v136, vcc
v_cvt_pk_bf16_f32 v{AE}, v136, v136
v_lshlrev_b32 v137, 16, v{AE}
v_sub_f32 v136, v136, v137
v_cvt_pk_bf16_f32 v{AE}, v137, v136
v_and_b32 v137, s{MASK}, v{AE}
v_sub_f32 v136, v136, v137
v_cvt_pk_bf16_f32 v{AE+1}, v136, 0
"""))
bg.drain_hi()
k.stamp("g1set")
def freg(b, i): return vr(160 + 16*(b % 6) + 4*i, 4)
def h1_table():
    ls = [f"s_mul_i32 s84, s{RG2}, 114688", f"s_mul_i32 s85, s{WV}, {28*1024}", "s_add_u32 s84, s84, s85", f"s_add_u32 s84, s84, {H1F}",
          f"s_lshl_b32 s85, s{ROT2}, 12", "s_add_u32 s16, s85, s84", f"s_add_u32 s85, s84, {7*4096}"]
    for g4 in range(1, 7):
        ls.append(f"s_add_u32 s{16+g4}, s{15+g4}, 4096\ns_cmp_ge_u32 s{16+g4}, s85\ns_cselect_b32 s{16+g4}, s84, s{16+g4}")
    return ls
def ftab(b): return 16 + b if b < 7 else 52 + (b - 7) if b < 11 else 64 + (b - 11)
def f_ins(b, i):
    return f"buffer_load_dwordx4 {freg(b, i)}, v{L16}, {srd(SWS)}, s{ftab(b)} offen offset:{1024*i} sc1"
def f_queue(b, rdy=None):
    for i in range(4):
        bg.hv.append((lambda i=i: k.vm(f_ins(b, i), f"f{b}"), LH if b % 7 == 0 else LHIT, 230 if b % 7 == 0 else 76, False, rdy))
M = 135
def hchk_seq(hf, c):
    base = ""
    R = lambda i: f"ds_read_b128 {vr(HV+4*(i&1),4)}, v{HCK} offset:{c*4096+i*1024}"
    def mx(first):
        ls = [f"v_max3_u32 v{M}, v{HV}, v{HV+1}, v{HV if first else M}"]
        ls += [f"v_max3_u32 v{M}, v{M}, v{HV+j}, v{HV+j+1}" for j in (2, 4, 6)]
        return ls
    return R, mx
def hchk_branch(hf, c):
    Lb = f"Lhs_{hf}_{c}"
    k(f"v_cmp_eq_u32 vcc, -1, v{M}")
    k(f"s_cbranch_vccnz {Lb}")
    k.label(f"{Lb}_ret")
    def stub():
        R, mx = hchk_seq(hf, c)
        k.label(Lb)
        k(f"s_mov_b32 s83, m0\ns_mov_b32 s81, s100")
        k.label(f"{Lb}_l")
        k(f"s_add_u32 s91, s91, 1\ns_cmp_ge_u32 s91, {SPIN}\ns_cbranch_scc1 {Lb}_x")
        h_first(hf, c)
        for i in range(4): k(h_ins(i))
        k("s_waitcnt vmcnt(0)")
        for p in range(2):
            k(R(2*p)); k(R(2*p+1)); k("s_waitcnt lgkmcnt(0)")
            for l in mx(p == 0): k(l)
        k(f"v_cmp_eq_u32 vcc, -1, v{M}\ns_cbranch_vccnz {Lb}_l")
        k.label(f"{Lb}_x")
        k(f"s_mov_b32 m0, s83\ns_mov_b32 s100, s81\ns_branch {Lb}_ret")
    stubs.append(stub)
def rd_ins(N, tb):
    n = N % 32; c, i = n // 8, n % 8
    for rd in range(2):
        k.ds(f"ds_read_b64_tr_b16 {vr(BF+8*(N%3)+4*tb+2*rd,2)}, v{AX+(i>>1)} offset:{tb*32768 + c*4096 + (i&1)*1024 + rd*512}", f"b{N}")
def epi_lines(hf):
    acc = AXr if hf == 0 else AYr
    out = []
    for tb in range(2):
        sb = H1B if tb == 0 else HB1
        if hf: out.append(("A", f"s_add_u32 s{sb}, s{sb}, {32*114688}"))
        for fr in range(2):
            O = EO + 4*fr
            for d in range(4):
                r = acc + 16*tb + 8*fr + 2*d
                out += [("A", f"v_cvt_pk_bf16_f32 v{O+d}, v{r}, v{r+1}"), ("A", f"v_pk_max_i16 v{O+d}, v{O+d}, 0"), ("A", f"v_or_b32 v{O+d}, v{O+d}, v{SG}")]
            out.append(("V", f"buffer_store_dwordx4 {vr(O,4)}, v{L16}, {srd(SH1)}, s{sb} offen offset:{1024*fr} sc1"))
    return out
def xmf(hf, tb):
    acc = (AXr if hf == 0 else AYr) + 16*tb
    return f"v_mfma_f32_32x32x16_bf16 {vr(acc,16)}, {vr(AE,4)}, {vr(BX+4*tb,4)}, {vr(acc,16)}"
def setav(l):
    def f(): bg.avail = l
    return f
H1AT, FAT = opt("h1at", 13), opt("fat", 26)
WA = opt("wa", 5)
def wdone(g): return lambda: bg.ii > 8 + min(13, g)
def hk_h1(): bg.avail = ["C0"]; h_queue(1); hiA(h1_table())
def hk_f(): f_queue(0, wdone(WA)); f_queue(1, wdone(WA+2)); f_queue(2, wdone(WA+4))
def hk_e0():
    for ty, l in epi_lines(0):
        hiA([l]) if ty == "A" else hiF(lambda l=l: k.vm(l, "h1st0"))
    hiF(lambda: k.stamp("h1st0"))
hooks = {0: setav(["C1", "B2", "B3", "C0"]), H1AT: hk_h1, 35: hk_e0, 39: setav(["U0", "U1", "C0", "C1"]), 45: setav(["U0", "U1", "C0"]), 32+FAT: hk_f}
bg.wait("h0_0")
R_, mx_ = hchk_seq(0, 0)
for p in range(2):
    k.ds(R_(2*p), "hv"); k.ds(R_(2*p+1), "hv"); idle(100); k.dswait("hv")
    for l in mx_(p == 0): k(l)
hchk_branch(0, 0)
k("s_barrier")
k.stamp("g1w0")
for N in range(2):
    for tb in range(2): rd_ins(N, tb)
k.adv(100)
for N in range(64):
    hf, n = N // 32, N % 32
    acc = AXr if hf == 0 else AYr
    if N in hooks: hooks[N]()
    k.dswait(f"b{N}")
    i = n % 8
    C1 = N // 8 + 1; ch, cc_ = C1 // 4, C1 % 4
    R_, mx_ = hchk_seq(ch, cc_)
    for tb in range(2):
        cc = "0" if n == 0 else vr(acc+16*tb,16)
        k(f"v_mfma_f32_32x32x16_bf16 {vr(acc+16*tb,16)}, {w1reg(n)}, {vr(BF+8*(N%3)+4*tb,4)}, {cc}")
        if tb == 0 and i == 6 and C1 < 8:
            if n == 22:
                bg.free_slots(["C1"])
                if "C1" in bg.lasttag: k.dswait(bg.lasttag["C1"])
            if n == 30:
                k.dswait("sx")
                for j in range(4): k(f"v_add_u32 v{AX+j}, {RB}, v{AX+j}")
            k("s_barrier"); k.t -= 32
        if tb == 0 and N == 61: k.dswait("sx"); k("s_barrier"); k.t -= 32
        if N + 2 < 64: rd_ins(N+2, tb)
        if C1 < 8:
            if i == 0 and tb == 1:
                if n == 24: k(f"v_add_u32 v{HCK}, {RB}, v{HCK}")
            if i == 1:
                if tb == 0: bg.wait(f"h{ch}_{cc_}")
                k.ds(R_(tb), "hv")
            if i == 3:
                if tb == 0:
                    k.dswait("hv")
                    for l in mx_(True): k(l)
                else:
                    k.ds(R_(2), "hv"); k.ds(R_(3), "hv")
            if i == 5:
                if tb == 0:
                    k.dswait("hv")
                    for l in mx_(False): k(l)
                else: hchk_branch(ch, cc_)
        if n == 28 and tb == 0:
            k(f"v_cndmask_b32 v136, v{SA0}, v{SA0+1}, s[70:71]")
            k(f"v_cndmask_b32 v137, v{SA1}, v{SA1+1}, s[70:71]")
            k.ds(f"ds_write_b64 v{XW}, v[136:137]", "sx")
        if (N == 30 and tb == 1) or (N == 61 and tb == 1) or (N == 31 and tb == 0) or (N == 62 and tb == 0):
            j0 = 0 if tb == 1 else 2
            for j in (j0, j0+1): k.ds(f"ds_read_b64 {vr(HV+2*j,2)}, v{XRd} offset:{512*j}", "sr")
        if (N == 32 and tb == 0) or (N == 63 and tb == 0):
            k.dswait("sr")
            k(f"v_add_f32 v{HV}, v{HV}, v{HV+2}\nv_add_f32 v{HV+4}, v{HV+4}, v{HV+6}\nv_add_f32 v{HV+1}, v{HV+1}, v{HV+3}\nv_add_f32 v{HV+5}, v{HV+5}, v{HV+7}")
        if (N == 32 and tb == 1) or (N == 63 and tb == 1):
            h_ = 0 if N == 32 else 1
            k(f"v_add_f32 v{SV+h_}, v{HV}, v{HV+4}\nv_add_f32 v137, v{HV+1}, v{HV+5}")
            k(f"v_mul_f32 v136, 0xbb000000, v{SV+h_}\nv_mul_f32 v137, 0xbb000000, v137")
            for t_ in range(2):
                k(f"v_cvt_pk_bf16_f32 v{BX+4*t_}, v{136+t_}, v{136+t_}\nv_cvt_pk_bf16_f32 v{BX+4*t_+1}, v{136+t_}, v{136+t_}")
        if 35 <= N < 46: bg.push(opt("mpe", 3))
        k.slack()
        if i < 2:
            sa = SA0 if tb == 0 else SA1
            cc = "0" if n == 0 else vr(sa,4)
            k(f"v_mfma_f32_16x16x32_bf16 {vr(sa,4)}, {vr(SEL,4)}, {vr(BF+8*(N%3)+4*tb,4)}, {cc}")
        if N == 33 and tb == 0:
            k(xmf(0, 0)); k.slack(); k(xmf(0, 1)); k.slack()
    if N == 31: k.stamp("g1_0")
k("s_nop 1")
k(xmf(1, 0)); k(xmf(1, 1))
k.stamp("g1_1")
bg.drain_hi()
k.mode = "valu"; k.every = 3
k(f"""
s_lshl_b32 s78, s{WV}, 13
v_add_u32 v136, s78, v{LP}
v_add_u32 v137, {RB}, v136
""")
for hf in range(2):
    for u in range(8):
        for rd in range(2):
            r_ = (16 if hf == 0 else 80) + 4*u + 2*rd
            if hf == 1 and u == 7: r_ = 116 + 2*rd
            k.ds(f"ds_read_b64_tr_b16 {vr(r_,2)}, v{136+hf} offset:{u*1024+rd*512}", f"q{hf}")
for ty, l in epi_lines(1):
    k(l) if ty == "A" else k.vm(l, "h1st1")
k.note(91, 61)
k.stamp("g1e1")
k(f"""
v_and_b32 v120, 31, v{LANE}
v_lshlrev_b32 v121, 5, v120
v_lshrrev_b32 v122, 5, v{LANE}
v_lshl_add_u32 v121, v122, 2, v121
s_lshl_b32 s79, s{WV}, 3
s_add_u32 s79, s79, {QX}
v_add_u32 v121, s79, v121
v_lshlrev_b32 v120, 2, v120
v_add_u32 v120, {SXX}, v120
""")
for hf in range(2):
    k.dswait(f"q{hf}")
    for u in range(32):
        r_ = (16 if hf == 0 else 80) + u
        if hf == 1 and u >= 28: r_ = 116 + u - 28
        c = "0" if u < 2 else f"v{124+2*hf+(u&1)}"
        k(f"v_dot2_f32_bf16 v{124+2*hf+(u&1)}, v{r_}, v{r_}, {c}")
for g4 in range(7): k(f"s_add_u32 s{ftab(7+g4)}, s{16+g4}, {32*114688}")
k(f"""
v_add_f32 v124, v124, v125
v_add_f32 v126, v126, v127
""")
k.ds(f"ds_write_b32 v121, v124", "qw")
k.ds(f"ds_write_b32 v121, v126 offset:1024", "qw")
k.ds(f"ds_write_b32 v120, v{SV}", "qw")
k.ds(f"ds_write_b32 v120, v{SV+1} offset:128", "qw")
k(f"s_mov_b32 s97, 0\ns_mov_b32 s96, 0x80008000")
k.mode = None
PWA, PRA, OV, QA, SA_, RA_, RR = 4, 6, 2, 128, 129, 130, 132
hiA(L(f"""
s_lshl_b32 s78, s{WV}, 13
v_add_u32 v{PWA}, s78, v{L16}
v_add_u32 v{PWA+1}, {RB}, v{PWA}
s_and_b32 s78, s{WV}, 1
s_lshr_b32 s79, s{WV}, 1
v_and_b32 v134, 15, v{LANE}
s_lshl_b32 s81, s78, 4
v_add_u32 v134, s81, v134
v_lshrrev_b32 v135, 4, v{LANE}
s_lshl_b32 s81, s79, 2
v_add_u32 v135, s81, v135
v_lshlrev_b32 v{PRA}, 10, v135
v_lshl_add_u32 v{PRA}, v134, 4, v{PRA}
v_add_u32 v{PRA+1}, {RB}, v{PRA}
v_lshlrev_b32 v{OV}, 10, v134
v_lshl_add_u32 v{OV}, v135, 4, v{OV}
v_lshlrev_b32 v{QA}, 5, v134
v_add_u32 v{QA}, {QX}, v{QA}
v_lshlrev_b32 v{SA_}, 2, v134
v_add_u32 v{SA_}, {SXX}, v{SA_}
s_sub_u32 s81, s{DT}, s{ROT1}
s_and_b32 s83, s81, 1
s_lshl_b32 s83, s83, 14
s_bfe_u32 s81, s81, 0x20001
s_lshl_b32 s81, s81, 12
s_add_u32 s81, s81, s83
s_lshl_b32 s83, s78, 5
s_add_u32 s81, s81, s83
v_and_b32 v{RA_}, 0xd8, v{LP}
v_lshl_add_u32 v{RA_}, v135, 9, v{RA_}
v_add_u32 v{RA_}, s81, v{RA_}
v_add_u32 v{RA_+1}, {RB}, v{RA_}
s_lshl_b32 s98, s{RG2}, 15
s_lshl_b32 s79, s{DT}, 7
s_add_u32 s98, s98, s79
s_add_u32 s99, s98, 0x100000
"""))
hiF(lambda: (k.dswait("qw"), k("s_barrier"), k.adv(-30)))
k.stamp("g2start")
def r_queue():
    for ins in (f"ds_read_b128 v[80:83], v{QA}", f"ds_read_b128 v[84:87], v{QA} offset:16", f"ds_read_b128 v[88:91], v{QA} offset:1024", f"ds_read_b128 v[92:95], v{QA} offset:1040",
                f"ds_read_b32 v96, v{SA_}", f"ds_read_b32 v97, v{SA_} offset:128"): hiD(ins, "qr")
    hiW("qr")
    lines = []
    for hf in range(2):
        B = 80 + 8*hf
        for i in range(4): lines.append(f"v_add_f32 v{B+i}, v{B+i}, v{B+4+i}")
        lines += [f"v_add_f32 v{B}, v{B}, v{B+1}", f"v_add_f32 v{B+2}, v{B+2}, v{B+3}", f"v_add_f32 v{98+hf}, v{B}, v{B+2}"]
    for hf in range(2):
        lines += [f"v_mul_f32 v{96+hf}, 0x3b000000, v{96+hf}", f"v_mul_f32 v{98+hf}, 0x3b000000, v{98+hf}", f"v_fma_f32 v{98+hf}, -v{96+hf}, v{96+hf}, v{98+hf}"]
    lines += ["v_cvt_pk_bf16_f32 v100, v98, v99", "v_pk_max_i16 v100, v100, 0"] + unp(98, 100) + \
             ["v_add_f32 v98, 0x3727c5ac, v98", "v_add_f32 v99, 0x3727c5ac, v99", "v_cvt_pk_bf16_f32 v100, v98, v99"] + unp(98, 100) + \
             ["v_sqrt_f32 v98, v98", "v_sqrt_f32 v99, v99\ns_nop 0", "v_cvt_pk_bf16_f32 v100, v98, v99", f"v_or_b32 v100, v100, v{SG}"] + unp(98, 100) + \
             [f"v_rcp_f32 v{RR}, v98", f"v_rcp_f32 v{RR+1}, v99\ns_nop 0"]
    hiA(lines)
OSC = " sc1" if opt("osc", 0) else ""
def res_queue(hf):
    for rd_ in range(2):
        hiD(f"ds_read_b64_tr_b16 {vr(84+2*rd_,2)}, v{RA_+hf} offset:{rd_*256}", "rs")
    hiW("rs")
    for i in range(4): hiA(unp(88+2*i, 84+i))
def fin_queue(hf, packed):
    P = 16
    for w in range(4):
        for g in range(2):
            hiD(f"ds_read_b128 {vr(P+8*w+4*g,4)}, v{PRA+hf} offset:{32768 + w*8192 + g*512}", "fp")
    hiW("fp")
    lines = []
    for i in range(4):
        a_ = P + 2*i
        if packed:
            lines += [f"v_pk_add_f32 {vr(a_,2)}, {vr(a_,2)}, {vr(a_+8,2)}", f"v_pk_add_f32 {vr(a_+16,2)}, {vr(a_+16,2)}, {vr(a_+24,2)}",
                      f"v_pk_add_f32 {vr(a_,2)}, {vr(a_,2)}, {vr(a_+16,2)}", f"v_pk_mul_f32 {vr(a_,2)}, {vr(a_,2)}, {vr(RR,2)} op_sel:[0,{hf}] op_sel_hi:[1,{hf}]"]
        else:
            for e in range(2):
                lines += [f"v_add_f32 v{a_+e}, v{a_+e}, v{a_+8+e}", f"v_add_f32 v{a_+16+e}, v{a_+16+e}, v{a_+24+e}",
                          f"v_add_f32 v{a_+e}, v{a_+e}, v{a_+16+e}", f"v_mul_f32 v{a_+e}, v{a_+e}, v{RR+hf}"]
        lines += [f"v_cvt_pk_bf16_f32 v{a_}, v{a_}, v{a_+1}"] + unp(a_, a_)
        if packed:
            lines += [f"v_pk_add_f32 {vr(a_,2)}, {vr(a_,2)}, {vr(88+2*i,2)}"]
        else:
            lines += [f"v_add_f32 v{a_}, v{a_}, v{88+2*i}", f"v_add_f32 v{a_+1}, v{a_+1}, v{89+2*i}"]
        lines += [f"v_cvt_pk_bf16_f32 v{80+i}, v{a_}, v{a_+1}"]
    hiA(lines)
    hiF(lambda: k.vm(f"buffer_store_dwordx4 v[80:83], v{OV}, {srd(SOUT)}, s{98+hf} offen{OSC}", "out"))
CK = 138
def chk_lines(b):
    regs = [160 + 16*(b % 6) + j for j in range(16)]
    ls = [f"v_xor_b32 v{CK}, v{regs[0]}, v{SG}"]
    ls += [f"v_bitop3_b32 v{CK}, v{CK}, v{x}, v{SG} bitop3:0xf6" for x in regs[1:]]
    ls += [f"v_and_b32 v{CK}, s96, v{CK}", f"v_cmp_ne_u32 vcc, 0, v{CK}"]
    return ls
def chk_branch(b, upto):
    Lb = f"Lfs_{b}"
    k(f"s_cbranch_vccnz {Lb}")
    k.label(f"{Lb}_ret")
    def stub():
        k.label(Lb)
        k(f"s_add_u32 s97, s97, 1\ns_cmp_ge_u32 s97, {SPIN}\ns_cbranch_scc1 {Lb}_ret")
        for bb in range(b, upto+1):
            for i in range(4): k(f_ins(bb, i))
        k("s_waitcnt vmcnt(0)")
        for l in chk_lines(b): k(l)
        k(f"s_cbranch_vccnz {Lb}\ns_branch {Lb}_ret")
    stubs.append(stub)
k.VSP = opt("vsp2", 56); bg.cap = opt("cap2", 12)
LA2 = opt("la2", 3)
for b_ in range(3, LA2+1): f_queue(b_, wdone(2*b_+WA))
bg.wait("f0")
for l in chk_lines(0): k(l)
chk_branch(0, 2)
k.stamp("g2f0")
r_queue(); res_queue(0)
for b in range(14):
    hf = b // 7
    acc = AXr if hf == 0 else AYr
    ck = chk_lines(b+1) if b + 1 < 14 else []
    if b < 7 and not NOW:
        bg.need(lambda g: g[0] == 1 or g[1] <= 2*b+1)
        k.dswait(f"r{8+2*b+1}")
    if b + LA2 + 1 < 14: f_queue(b+LA2+1, wdone(2*(b+LA2+1)+WA))
    for m in range(8):
        pos = 4*(b%7) + m//2; t = m & 1
        cc = "0" if pos == 0 else vr(acc+16*t,16)
        k(f"v_mfma_f32_32x32x16_bf16 {vr(acc+16*t,16)}, {ar(8*pos+4*t,4)}, {freg(b, m//2)}, {cc}")
        if b == 7 and m == 2:
            bg.drain_hi()
            for j in range(8): hiD(f"ds_write_b128 v{PWA}, {vr(AXr+4*j,4)} offset:{32768 + j*1024}", "pw0")
            hiW("pw0", 300)
            hiF(lambda: (k("s_barrier"), k.adv(-30)))
            fin_queue(0, False); res_queue(1)
        if ck and m >= 3:
            if m == 3: bg.wait(f"f{b+1}")
            for l in ck[(m-3)*4:(m-3)*4+4]: k(l)
            if m == 7: chk_branch(b+1, min(b+3, 13))
        k.slack(maxD=1 if b == 7 else 3)
    if b % 7 == 6: k.stamp(f"g2_{hf}")
bg.drain_hi()
k("s_nop 9")
for j in range(8):
    k.ds(f"ds_write_b128 v{PWA+1}, {vr(AYr+4*j,4)} offset:{32768 + j*1024}", "pw1")
k.note(97, 60)
k.dswait()
k("s_barrier")
k.stamp("g2bar")
fin_queue(1, True); bg.drain_hi()
print("model t from pub:", k.t - T_PUB); print(" ".join(x.split("@")[0] + "@" + str(int(x.split("@")[1]) - T_PUB) for x in bg.log))
finish()
```
